```python
import torch

def _softmax(x, axis=-1):
    return torch.softmax(x, dim=axis)
def _gelu(x):
    return torch.nn.functional.gelu(x, approximate="tanh")
def _silu(x):
    return torch.nn.functional.silu(x)
def _sigmoid(x):
    return torch.sigmoid(x)
def _layernorm(x, axis=-1, eps=1e-5):
    m = x.mean(dim=axis, keepdim=True)
    v = x.var(dim=axis, keepdim=True, unbiased=False)
    return (x - m) / torch.sqrt(v + eps)
def _scatter_add(tgt, idx, src, axis=0):
    return tgt.clone().index_add_(axis, idx, src)
def _segment_sum(src, seg, n):
    out = torch.zeros((n,) + src.shape[1:], dtype=src.dtype)
    return out.index_add_(0, seg, src)
def _pad(x, pw):
    flat = tuple(v for pair in reversed(pw) for v in pair)
    return torch.nn.functional.pad(x, flat)

kernel_name = 'concat_heads__mha_block_cached__mha_block_cached__near_ridge'

def setup_inputs():

    _w = (lambda a: (lambda t: t.to(torch.bfloat16) if t.is_floating_point() else t)(torch.as_tensor(a)))
    def _A_setup():
        B, Sq, D = 8, 128, 512
        H, Sk, Dh = 32, 512, 128
        return {
            "x": _w((lambda *s: torch.randn(*s, dtype=torch.bfloat16) * 0.8)(B, Sq, D)),
            "k_cache": _w((lambda *s: torch.randn(*s, dtype=torch.bfloat16) * 0.8)(B, H, Sk, Dh)),
            "v_cache": _w((lambda *s: torch.randn(*s, dtype=torch.bfloat16) * 0.05)(B, H, Sk, Dh)),
            "wq": _w((lambda *s: torch.randn(*s, dtype=torch.bfloat16) * 0.8)(D, H * Dh) * (D ** -0.5)),
            "wo": _w((lambda *s: torch.randn(*s, dtype=torch.bfloat16) * 0.05)(H * Dh, D) * ((H * Dh) ** -0.5)),
        }
    _A_in = _A_setup()

    def _B_setup():
        B, Sq, D = 8, 128, 512
        H, Sk, Dh = 32, 512, 128
        return {
            "x": _w((lambda *s: torch.randn(*s, dtype=torch.bfloat16) * 0.8)(B, Sq, D)),
            "k_cache": _w((lambda *s: torch.randn(*s, dtype=torch.bfloat16) * 0.8)(B, H, Sk, Dh)),
            "v_cache": _w((lambda *s: torch.randn(*s, dtype=torch.bfloat16) * 0.05)(B, H, Sk, Dh)),
            "wq": _w((lambda *s: torch.randn(*s, dtype=torch.bfloat16) * 0.8)(D, H * Dh) * (D ** -0.5)),
            "wo": _w((lambda *s: torch.randn(*s, dtype=torch.bfloat16) * 0.05)(H * Dh, D) * ((H * Dh) ** -0.5)),
        }
    _B_in = _B_setup()

    return {
        "A_x": _A_in["x"],
        "A_k_cache": _A_in["k_cache"],
        "A_v_cache": _A_in["v_cache"],
        "A_wq": _A_in["wq"],
        "A_wo": _A_in["wo"],
        "B_x": _B_in["x"],
        "B_k_cache": _B_in["k_cache"],
        "B_v_cache": _B_in["v_cache"],
        "B_wq": _B_in["wq"],
        "B_wo": _B_in["wo"],
    }

def reference(A_x, A_k_cache, A_v_cache, A_wq, A_wo, B_x, B_k_cache, B_v_cache, B_wq, B_wo):
    def _A_ref(x, k_cache, v_cache, wq, wo):
        B, Sq, D = x.shape
        H, Dh = 32, 128
        q = (lambda x, *d: x.permute(*d))((x @ wq).reshape(B, Sq, H, Dh), 0, 2, 1, 3)
        scores = torch.einsum("bhqd,bhkd->bhqk", q, k_cache) * (Dh ** -0.5)
        p = _softmax(scores, axis=-1)
        o = torch.einsum("bhqk,bhkd->bhqd", p, v_cache)
        return (lambda x, *d: x.permute(*d))(o, 0, 2, 1, 3).reshape(B, Sq, H * Dh) @ wo

    def _B_ref(x, k_cache, v_cache, wq, wo):
        B, Sq, D = x.shape
        H, Dh = 32, 128
        q = (lambda x, *d: x.permute(*d))((x @ wq).reshape(B, Sq, H, Dh), 0, 2, 1, 3)
        scores = torch.einsum("bhqd,bhkd->bhqk", q, k_cache) * (Dh ** -0.5)
        p = _softmax(scores, axis=-1)
        o = torch.einsum("bhqk,bhkd->bhqd", p, v_cache)
        return (lambda x, *d: x.permute(*d))(o, 0, 2, 1, 3).reshape(B, Sq, H * Dh) @ wo

    a = _A_ref(A_x, A_k_cache, A_v_cache, A_wq, A_wo)
    b = _B_ref(B_x, B_k_cache, B_v_cache, B_wq, B_wo)
    return torch.concatenate([a, b], axis=-1)
```

```python
KNAME = 'concat_heads__mha_block_cached__mha_block_cached__near_ridge_kernel'
HEADER = open('concat_heads__mha_block_cached__mha_block_cached__near_ridge.s.ref').read().split('; Override launch')[0]

class Asm:
    def __init__(self):
        self.lines = []
        self.nlab = 0
    def __call__(self, s):
        for l in s.strip('\n').split('\n'):
            self.lines.append('    ' + l.strip() if not l.strip().endswith(':') else l.strip())
    def raw(self, s):
        self.lines.append(s)
    def label(self, base='L'):
        self.nlab += 1
        return f'{base}_{self.nlab}'
    def text(self):
        return '\n'.join(self.lines) + '\n'

def kernel_text(name, body, vgpr, sgpr=102, accum=None, agpr=0):
    if accum is None:
        accum = (vgpr + 3)//4*4
    nfv = accum + agpr if agpr else vgpr
    t = f'.globl {name}\n.p2align 8\n.type {name},@function\n{name}:\n{body}'
    d = f'''.p2align 6
.amdhsa_kernel {name}
  .amdhsa_next_free_vgpr {nfv}
  .amdhsa_next_free_sgpr {sgpr}
  .amdhsa_accum_offset {accum}
  .amdhsa_group_segment_fixed_size 0
  .amdhsa_kernarg_size 104
  .amdhsa_user_sgpr_count 2
  .amdhsa_user_sgpr_kernarg_segment_ptr 1
  .amdhsa_system_sgpr_workgroup_id_x 1
  .amdhsa_float_denorm_mode_32 3
.end_amdhsa_kernel
'''
    return t, d

def file_text(launches, kernels):
    s = HEADER
    if len(launches) == 1 and launches[0][0] == KNAME:
        n,g,b,l = launches[0]
        s += f'; @launch grid=({g},1,1) block=({b},1,1) lds={l}\n'
    else:
        for n,g,b,l in launches:
            s += f'; @launch kernel={n} grid=({g},1,1) block=({b},1,1) lds={l}\n'
    s += '.amdgcn_target "amdgcn-amd-amdhsa--gfx950"\n.text\n'
    for t,d in kernels:
        s += t
    s += '.section .rodata,"a"\n'
    for t,d in kernels:
        s += d
    return s

STAMP_OFF = 268435456 - 65536*4
```

```python
import re, sys

def regs_of(tok):
    tok = tok.strip()
    m = re.fullmatch(r'([vsa])\[(\d+):(\d+)\]', tok)
    if m:
        return [(m.group(1), i) for i in range(int(m.group(2)), int(m.group(3))+1)]
    m = re.fullmatch(r'([vsa])(\d+)', tok)
    if m:
        return [(m.group(1), int(m.group(2)))]
    if tok == 'vcc': return [('s','vcc')]
    if tok == 'exec': return [('s','exec')]
    if tok == 'm0': return [('s','m0')]
    if tok.startswith('-') or tok.startswith('|'):
        return regs_of(tok.strip('-|'))
    return []

TRANS = ('v_exp_f32','v_log_f32','v_rcp_f32','v_rsq_f32','v_sqrt_f32','v_sin_f32','v_cos_f32')

def parse(line):
    line = line.split(';')[0].split('//')[0].strip()
    if not line or line.endswith(':') or line.startswith('.'):
        return None
    parts = line.split(None, 1)
    op = parts[0]
    ops = []
    if len(parts) > 1:
        ops = [x.strip() for x in parts[1].split(',')]
        if ops:
            last = ops[-1].split()
            ops[-1] = last[0] if last else ''
            mods = last[1:]
        else:
            mods = []
    else:
        mods = []
    return op, ops, mods

def classify(op, ops, mods):
    d = []; s = []
    kind = 'other'
    if op.startswith('v_mfma'):
        kind = 'mfma'; d = regs_of(ops[0]); s = regs_of(ops[1]) + regs_of(ops[2]);
        c = regs_of(ops[3])
        return dict(kind=kind, dst=d, src=s, srcc=c)
    if op.startswith('v_cmp'):
        kind = 'valu'; d = regs_of(ops[0]); s = sum((regs_of(x) for x in ops[1:]), [])
    elif op.startswith('v_permlane'):
        kind = 'permlane'; d = regs_of(ops[0]) + regs_of(ops[1]); s = list(d)
    elif op.startswith('v_readfirstlane') or op.startswith('v_readlane'):
        kind = 'readlane'; d = regs_of(ops[0]); s = sum((regs_of(x) for x in ops[1:]), [])
    elif op.startswith('v_'):
        kind = 'trans' if op.replace('_e32','').replace('_e64','') in TRANS else 'valu'
        d = regs_of(ops[0]); s = sum((regs_of(x) for x in ops[1:]), [])
        if op.startswith('v_cndmask') and len(ops) == 3: s += [('s','vcc')]
        if op.startswith('v_fmac') or op.startswith('v_pk_fmac') or op.startswith('v_dot2c'): s += d
        if 'dpp' in op or any(m.startswith(('row_','quad_perm','wave_')) for m in mods): kind = 'dpp'
        if '_co_' in op:
            d = regs_of(ops[0]) + regs_of(ops[1]); s = sum((regs_of(x) for x in ops[2:]), [])
    elif op.startswith('ds_read') :
        kind = 'ds'; d = regs_of(ops[0]); s = regs_of(ops[1])
    elif op.startswith('ds_write'):
        kind = 'ds'; s = sum((regs_of(x) for x in ops), [])
    elif op.startswith('ds_'):
        kind = 'ds'; d = regs_of(ops[0]); s = sum((regs_of(x) for x in ops[1:]), [])
    elif op.startswith('buffer_load') or op.startswith('global_load'):
        kind = 'vmem'
        if 'lds' in mods or '_lds_' in op:
            s = sum((regs_of(x) for x in ops), []) + [('s','m0')]
            kind = 'dma'
        else:
            d = regs_of(ops[0]); s = sum((regs_of(x) for x in ops[1:]), [])
    elif op.startswith('buffer_store') or op.startswith('global_store'):
        kind = 'vstore'; s = sum((regs_of(x) for x in ops), [])
        data = regs_of(ops[0]) if op.startswith('buffer') else regs_of(ops[1])
        return dict(kind=kind, dst=[], src=s, data=data, wide=('x4' in op or 'x3' in op))
    elif op.startswith('buffer_atomic') or op.startswith('global_atomic'):
        kind = 'vmem'; s = sum((regs_of(x) for x in ops), [])
    elif op.startswith('buffer_') :
        kind = 'vmem'
    elif op.startswith('s_nop'):
        kind = 'nop'
    elif op.startswith('s_'):
        kind = 'salu'
        if op.startswith(('s_cmp','s_cbranch','s_branch','s_waitcnt','s_barrier','s_endpgm','s_setprio','s_sleep')):
            s = sum((regs_of(x) for x in ops), [])
        else:
            d = regs_of(ops[0]) if ops else []; s = sum((regs_of(x) for x in ops[1:]), [])
    return dict(kind=kind, dst=d, src=s)

def check(text, verbose=True):
    ins = []
    for ln, line in enumerate(text.split('\n'), 1):
        p = parse(line)
        if p is None: continue
        op, ops, mods = p
        c = classify(op, ops, mods)
        c['op'] = op; c['ln'] = ln; c['line'] = line.strip()
        c['states'] = (int(ops[0], 0) + 1) if op == 's_nop' else 1
        ins.append(c)
    probs = []
    W = 24
    for i, c in enumerate(ins):
        dist = 0
        for j in range(i-1, max(-1, i-W-1), -1):
            p = ins[j]
            def ov(a, b): return bool(set(a) & set(b))
            need = 0; why = ''
            ck = c['kind']; pk = p['kind']
            vec_c = ck in ('valu','trans','permlane','readlane','dpp')
            if pk == 'mfma':
                if ck == 'mfma':
                    if ov(p['dst'], c['src']): need, why = 12, 'mfma D -> mfma A/B'
                    elif ov(p['dst'], c['srcc']) and p['dst'] != c['srcc']: need, why = 10, 'mfma D -> mfma C partial'
                    elif ov(p['dst'], c['dst']) and p['dst'] != c['dst'] : need, why = 12, 'mfma D -> mfma D partial WAW?'
                    elif ov(p['dst'], c['dst']) and p['dst'] == c['dst'] and c['srcc'] != p['dst']: need, why = 0, ''
                elif vec_c:
                    if ov(p['dst'], c['src']) or ov(p['dst'], c['dst']): need, why = 12, 'mfma D -> valu'
                    elif ov(p['srcc'], c['dst']): need, why = 7, 'mfma C WAR valu'
                elif ck in ('ds','vmem','dma','vstore'):
                    if ov(p['dst'], c['src']) or ov(p['dst'], c['dst']): need, why = 12, 'mfma D -> mem'
            if pk in ('valu','trans','permlane','dpp','readlane'):
                vd = [r for r in p['dst'] if r[0] in 'va']
                sd = [r for r in p['dst'] if r[0] == 's']
                if ck == 'mfma' and (ov(vd, c['src']) or ov(vd, c['srcc'])): need, why = max(need,2), 'valu -> mfma'
                if ck == 'permlane' and ov(vd, c['src']): need, why = max(need,2), 'valu -> permlane'
                if ck == 'dpp' and ov(vd, c['src']): need, why = max(need,2), 'valu -> dpp'
                if ck == 'readlane' and ov(vd, c['src']): need, why = max(need,1), 'valu -> readlane'
                if pk == 'trans' and vec_c and ck != 'trans' and ov(vd, c['src']): need, why = max(need,1), 'trans -> valu'
                if pk == 'trans' and ck == 'trans' and ov(vd, c['src']): need, why = max(need,1), 'trans -> trans(dep)'
                if sd and ck in ('vmem','dma','vstore') and ov(sd, c['src']): need, why = max(need,5), 'valu sgpr -> vmem'
                if sd and vec_c and ov(sd, c['src']): need, why = max(need,2), 'valu sgpr -> valu'
                if sd and ('s','exec') in sd and ck == 'mfma': need, why = max(need,4), 'exec -> mfma'
            if pk == 'salu' and ('s','m0') in p['dst'] and ck == 'dma': need, why = max(need,1), 'm0 -> dma'
            if pk == 'vstore' and p.get('wide') and ov(p['data'], c['dst']):
                need, why = max(need, 2), 'wide store data WAR'
            if need > dist:
                probs.append((c['ln'], f"{why}: need {need} have {dist}\n    P[{p['ln']}] {p['line']}\n    C[{c['ln']}] {c['line']}"))
            dist += p['states']
            if dist >= 20: break
    if verbose:
        for ln, s in probs[:40]: print('HAZARD', s)
        print(f'hazard check: {len(probs)} problems in {len(ins)} instrs')
    return probs

if __name__ == '__main__':
    for f in sys.argv[1:]:
        check(open(f).read())
```

```python
import sys, argparse
from asmlib import *
import hazchk

LOG2E = 1.4426950408889634
QSCALE = LOG2E / (128 ** 0.5)
import struct
def f2u(x): return struct.unpack('<I', struct.pack('<f', x))[0]

class G(Asm):
    def __init__(self):
        super().__init__()
        self.vmq = []
    def vm(self, s, tag):
        self(s); self.vmq.append(tag)
    def vmwait(self, tags, extra=''):
        if isinstance(tags, str): tags = [tags]
        last = -1
        for i, t in enumerate(self.vmq):
            if t in tags: last = i
        n = len(self.vmq) - 1 - last if last >= 0 else None
        if n is None: return
        assert n <= 63, n
        self(f's_waitcnt vmcnt({n}){extra}')
        self.vmq = self.vmq[last+1:]

KS = [0, 16384, 32768]
VBASE = 49152
XB = 98304
LDS_BYTES = 163840
OWS = 0
THR = 2.0**20

sW, sROLE, sRB = 3, 4, 5
sBR, sBATCH, sH1 = 6, 7, 20
SX, SWQ, SK, SV, SO = 8, 12, 16, 24, 28
sT0, sT1, sT2, sT3 = 32, 33, 34, 35
sKOFF = 36
sXW, sWW = 37, 38
sRET = 39
sOOFF = 40
sTHR = 41
sQS = 42
sST = 44
vKA = 2
vVA = 10
vDK = 14
vDV = 18
vL = 19
vT = 20
vOWN, vPAR, vLANE16 = 28, 29, 30
vXA = 21; vWA = 23
vDX, vDW = 27, 31
Q1, Q2 = 32, 64
OA = 96
NM = 160
S = 176
P = 192
F = 200
GV = 232
def vr(b, n): return f'v[{b}:{b+n-1}]'

def prologue_common(a, stamps):
    a(f'''
    s_cmp_ge_u32 s2, 256
    s_cbranch_scc1 L_end
    ''')

def k1(args):
    a = Asm()
    a(f'''
    s_cmp_ge_u32 s2, 256
    s_cbranch_scc1 K1_end
    v_lshrrev_b32 v1, 6, v0
    s_and_b32 s21, s2, 7
    v_readfirstlane_b32 s{sW}, v1
    s_lshr_b32 s22, s2, 3
    ''')
    if args.map == 'Z':
        a(f'''
        s_and_b32 s{sBR}, s21, 1
        s_lshr_b32 s23, s21, 1
        s_and_b32 s23, s23, 1
        s_lshl_b32 s23, s23, 2
        s_and_b32 s{sBATCH}, s22, 3
        s_add_u32 s{sBATCH}, s{sBATCH}, s23
        s_lshr_b32 s23, s21, 2
        s_lshl_b32 s23, s23, 4
        s_lshr_b32 s{sH1}, s22, 2
        s_add_u32 s{sH1}, s{sH1}, s23
        ''')
        HD = 8
    else:
        a(f'''
        s_and_b32 s{sBR}, s21, 1
        s_and_b32 s{sBATCH}, s22, 7
        s_lshr_b32 s23, s21, 1
        s_lshl_b32 s23, s23, 3
        s_lshr_b32 s{sH1}, s22, 3
        s_add_u32 s{sH1}, s{sH1}, s23
        ''')
        HD = 4
    a(f'''
    s_mul_i32 s23, s{sBR}, 40
    s_add_u32 s46, s0, s23
    s_addc_u32 s47, s1, 0
    s_load_dwordx4 s[48:51], s[46:47], 0
    s_load_dwordx4 s[52:55], s[46:47], 16
    s_load_dwordx2 s[56:57], s[0:1], 96
    s_lshr_b32 s{sROLE}, s{sW}, 2
    s_and_b32 s{sRB}, s{sW}, 3
    v_and_b32 v1, 63, v0
    v_lshlrev_b32 v{vLANE16}, 4, v1
    s_waitcnt lgkmcnt(0)
    ''')
    if args.stamps:
        a('s_memrealtime s[60:61]')
    a(f'''
    s_lshl_b32 s23, s{sBATCH}, 17
    s_add_u32 s{SX}, s48, s23
    s_addc_u32 s{SX+1}, s49, 0
    s_mov_b32 s{SX+2}, 0x20000
    s_mov_b32 s{SX+3}, 0x20000
    s_mov_b32 s{SWQ}, s54
    s_mov_b32 s{SWQ+1}, s55
    s_mov_b32 s{SWQ+2}, 0x400000
    s_mov_b32 s{SWQ+3}, 0x20000
    s_lshl_b32 s23, s{sBATCH}, 22
    s_add_u32 s{SK}, s50, s23
    s_addc_u32 s{SK+1}, s51, 0
    s_mov_b32 s{SK+2}, 0x400000
    s_mov_b32 s{SK+3}, 0x20000
    s_add_u32 s{SV}, s52, s23
    s_addc_u32 s{SV+1}, s53, 0
    s_mov_b32 s{SV+2}, 0x400000
    s_mov_b32 s{SV+3}, 0x20000
    s_lshl_b32 s23, s{sBR}, 3
    s_add_u32 s23, s23, s{sBATCH}
    s_lshl_b32 s23, s23, 20
    s_add_u32 s{SO}, s56, s23
    s_addc_u32 s{SO+1}, s57, 0
    s_add_u32 s{SO}, s{SO}, {OWS}
    s_addc_u32 s{SO+1}, s{SO+1}, 0
    s_mov_b32 s{SO+2}, 0x100000
    s_mov_b32 s{SO+3}, 0x20000
    s_mov_b32 s{sTHR}, {f2u(THR):#x}
    s_mov_b32 s{sQS}, {f2u(QSCALE):#x}
    ''')
    a(f'''
    v_and_b32 v200, 31, v1
    v_lshrrev_b32 v201, 5, v1
    v_bfe_u32 v202, v1, 2, 2
    v_and_b32 v203, 3, v1
    v_bfe_u32 v204, v1, 4, 1
    v_and_b32 v205, 1, v203
    v_lshlrev_b32 v205, 1, v205
    v_lshrrev_b32 v206, 1, v203
    v_or_b32 v205, v205, v206
    v_lshlrev_b32 v205, 3, v205
    v_lshl_or_b32 v205, v204, 5, v205
    ''')
    a(f'''
    s_lshl_b32 s23, s{sROLE}, 5
    v_add_u32 v206, s23, v200
    v_and_b32 v207, 15, v200
    v_xor_b32 v207, v207, v201
    v_lshlrev_b32 v207, 4, v207
    v_lshl_or_b32 v{vKA}, v206, 8, v207
    ''')
    for ks in range(1, 8):
        a(f'v_xor_b32 v{vKA+ks}, {ks<<5}, v{vKA}')
    a(f'''
    v_lshl_add_u32 v206, v201, 2, v202
    v_add_u32 v206, s23, v206
    v_lshlrev_b32 v206, 8, v206
    v_add_u32 v206, {VBASE}, v206
    v_add_u32 v206, v206, v205
    ''')
    for blk in range(4):
        a(f'''
        v_xor_b32 v207, {blk}, v202
        v_lshl_add_u32 v{vVA+blk}, v207, 6, v206
        ''')
    a(f'''
    v_lshl_add_u32 v206, v201, 3, v202
    v_lshlrev_b32 v206, 8, v206
    v_add_u32 v206, {XB}, v206
    v_add_u32 v206, v206, v205
    ''')
    for blk in range(4):
        a(f'''
        v_xor_b32 v207, {blk}, v202
        v_lshl_add_u32 v{vWA+blk}, v207, 6, v206
        ''')
    a(f'''
    s_lshl_b32 s23, s{sRB}, 5
    v_add_u32 v206, s23, v200
    v_bfe_u32 v207, v200, 2, 2
    v_xor_b32 v207, v207, v201
    v_lshlrev_b32 v207, 4, v207
    v_lshl_or_b32 v207, v206, 6, v207
    v_add_u32 v{vXA}, {XB}, v207
    v_xor_b32 v{vXA+1}, 32, v{vXA}
    ''')
    a(f'''
    s_lshl_b32 s23, s{sW}, 13
    s_add_u32 s23, s23, {XB}
    v_add_u32 v{vOWN}, s23, v{vLANE16}
    s_xor_b32 s23, s{sW}, 4
    s_lshl_b32 s23, s23, 13
    s_add_u32 s23, s23, {XB}
    v_add_u32 v{vPAR}, s23, v{vLANE16}
    ''')
    a(f'''
    v_lshrrev_b32 v206, 4, v1
    v_and_b32 v207, 15, v1
    v_lshlrev_b32 v208, 2, v206
    v_xor_b32 v208, v208, v207
    v_lshlrev_b32 v208, 4, v208
    v_lshl_or_b32 v{vDV}, v206, 8, v208
    v_lshl_or_b32 v{vDW}, v206, 13, v208
    ''')
    for n in range(4):
        a(f'''
        v_add_u32 v208, {4*n}, v206
        v_xor_b32 v208, v208, v207
        v_lshlrev_b32 v208, 4, v208
        v_lshl_or_b32 v{vDK+n}, v206, 8, v208
        ''')
    a(f'''
    v_lshrrev_b32 v208, 2, v1
    v_xor_b32 v209, v203, v206
    v_and_b32 v209, 3, v209
    v_lshlrev_b32 v209, 4, v209
    v_lshl_or_b32 v{vDX}, v208, 10, v209
    ''')
    a(f'''
    s_lshl_b32 s{sXW}, s{sRB}, 15
    s_lshl_b32 s{sWW}, s{sRB}, 16
    s_lshl_b32 s23, s{sH1}, 8
    s_add_u32 s{sWW}, s{sWW}, s23
    s_lshl_b32 s{sKOFF}, s{sH1}, 17
    s_lshl_b32 s23, s{sRB}, 12
    s_add_u32 s{sKOFF}, s{sKOFF}, s23
    s_lshl_b32 s{sOOFF}, s{sRB}, 18
    s_lshl_b32 s23, s{sH1}, 13
    s_add_u32 s{sOOFF}, s{sOOFF}, s23
    s_lshl_b32 s58, s{sRB}, 11
    s_lshl_b32 s59, s{sRB}, 12
    s_cmp_eq_u32 s{sROLE}, 0
    s_cbranch_scc0 K1_role1
    ''')
    for role in (0, 1):
        g = G()
        if role == 1: g('K1_role1:')
        k1_body(g, role, HD, args)
        a.lines += g.lines
    a('K1_end:\ns_endpgm')
    return a.text()

def q_piece_issue(g, p, HD):
    it, kind = divmod(p, 3)
    slot = XB + (p % 8) * 8192
    for n in range(2):
        g(f's_add_u32 m0, s58, {slot + n*1024}')
        if kind == 0:
            g(f's_add_u32 s{sT0}, s{sXW}, {it*64 + n*16384}')
            g.vm(f'buffer_load_dwordx4 v{vDX}, s[{SX}:{SX+3}], s{sT0} offen lds', f'q{p}')
        else:
            g(f's_add_u32 s{sT0}, s{sWW}, {(32*it + 4*n)*8192 + (kind-1)*HD*256}')
            g.vm(f'buffer_load_dwordx4 v{vDW}, s[{SWQ}:{SWQ+3}], s{sT0} offen lds', f'q{p}')

def kv_issue(g, t, HD, part, nt=' nt'):
    head2 = t >= 8
    off = (t % 8) * 16384 + (HD * 131072 if head2 else 0)
    slot = t % 3
    if part == 'K':
        g(f's_add_u32 m0, s59, {KS[slot]}')
        g(f's_add_u32 s{sT1}, s{sKOFF}, {off}')
        for n in range(4):
            g.vm(f'buffer_load_dwordx4 v{vDK+n}, s[{SK}:{SK+3}], s{sT1} offen offset:{n*1024}{nt} lds', f'kv{t}')
    else:
        g(f's_add_u32 m0, s59, {VBASE + slot*16384}')
        g(f's_add_u32 s{sT1}, s{sKOFF}, {off}')
        for n in range(4):
            g.vm(f'buffer_load_dwordx4 v{vDV}, s[{SV}:{SV+3}], s{sT1} offen offset:{n*1024}{nt} lds', f'kv{t}')

def stamp(g, args, idx):
    if args.stamps:
        g(f's_memrealtime s[{62+2*idx}:{63+2*idx}]')

def k1_body(g, role, HD, args):
    R = f'K1r{role}'
    kvlist = [(t, p) for t in range(3) for p in 'KV']
    if role == 0:
        for p in range(8): q_piece_issue(g, p, HD)
    else:
        for _ in range(args.kv0):
            t, p = kvlist.pop(0); kv_issue(g, t, HD, p)
    XF = NM
    for it in range(16):
        if role == 0:
            g.vmwait([f'q{3*it+2}'])
        g('s_barrier')
        if role == 0:
            if it >= 1:
                for p in range(3*it+5, 3*it+8):
                    if p < 48: q_piece_issue(g, p, HD)
        else:
            if kvlist and it >= 1 and (it % args.kvevery == 0):
                t, p = kvlist.pop(0); kv_issue(g, t, HD, p)
        px = ((3*it) % 8) * 8192
        pw = ((3*it + 1 + role) % 8) * 8192
        for s in range(2):
            g(f'ds_read_b128 {vr(XF+4*s,4)}, v{vXA+s} offset:{px}')
            for blk in range(4):
                for t in range(2):
                    d = F + 16*s + 4*blk + 2*t
                    g(f'ds_read_b64_tr_b16 {vr(d,2)}, v{vWA+blk} offset:{pw + 4096*s + 1024*t}')
        for s in range(2):
            for blk in range(4):
                done = 9*s + 1 + 2*(blk+1)
                g(f's_waitcnt lgkmcnt({min(15,18-done)})')
                c = vr(OA+16*blk,16) if (it or s) else '0'
                g(f'v_mfma_f32_32x32x16_bf16 {vr(OA+16*blk,16)}, {vr(F+16*s+4*blk,4)}, {vr(XF+4*s,4)}, {c}')
    assert role == 0 or not kvlist
    stamp(g, args, 0)
    g('s_nop 7\ns_nop 3')
    g('s_barrier')
    for blk in range(4):
        for i in range(0, 16, 2):
            g(f'v_mul_f32 v{OA+16*blk+i}, s{sQS}, v{OA+16*blk+i}')
            g(f'v_mul_f32 v{OA+16*blk+i+1}, s{sQS}, v{OA+16*blk+i+1}')
            g(f'v_cvt_pk_bf16_f32 v{Q1+8*blk+i//2}, v{OA+16*blk+i}, v{OA+16*blk+i+1}')
    g(f's_lshl_b32 s{sT0}, s{sRB}, 14')
    g(f's_add_u32 s{sT0}, s{sT0}, {XB}')
    g(f'v_add_u32 v{vT}, s{sT0}, v{vLANE16}')
    for ks in range(8):
        g(f'ds_write_b128 v{vT}, {vr(Q1+4*ks,4)} offset:{role*8192 + ks*1024}')
    g('s_waitcnt lgkmcnt(0)\ns_barrier')
    for ks in range(8):
        g(f'ds_read_b128 {vr(Q1+4*ks,4)}, v{vT} offset:{ks*1024}')
    for ks in range(8):
        g(f'ds_read_b128 {vr(Q2+4*ks,4)}, v{vT} offset:{8192 + ks*1024}')
    g('s_waitcnt lgkmcnt(0)')
    stamp(g, args, 1)
    rare_sites = []
    for t in range(16):
        head = t // 8; tt = t % 8
        Q = Q1 if head == 0 else Q2
        slot = t % 3
        first = tt == 0
        if role == 1:
            g.vmwait([f'kv{t}'])
        g('s_barrier')
        if role == 1 and t >= 1 and t + 2 < 16:
            kv_issue(g, t+2, HD, 'K'); kv_issue(g, t+2, HD, 'V')
        if t == 8:
            head_epilogue_b(g, role, 0, HD, args)
        for ks in range(8):
            g(f'ds_read_b128 {vr(F+4*ks,4)}, v{vKA+ks} offset:{KS[slot]}')
        def vread(s, blk, t2):
            d = (GV if s == 0 else F) + 4*blk + 2*t2
            g(f'ds_read_b64_tr_b16 {vr(d,2)}, v{vVA+blk} offset:{slot*16384 + 4096*s + 2048*t2}')
        vq = [(0,b,t2) for b in range(4) for t2 in range(2)]
        issued_v = 0
        for ks in range(8):
            g(f's_waitcnt lgkmcnt({7-ks+issued_v})')
            c = '0' if (first and ks == 0) else (vr(NM,16) if ks == 0 else vr(S,16))
            g(f'v_mfma_f32_32x32x16_bf16 {vr(S,16)}, {vr(F+4*ks,4)}, {vr(Q+4*ks,4)}, {c}')
            if ks < 4:
                for _ in range(2):
                    vread(*vq.pop(0)); issued_v += 1
        for b in range(4):
            for t2 in range(2): vread(1, b, t2)
        g('s_nop 3')
        if first:
            g(f'v_max3_f32 v{vT}, v{S}, v{S+1}, v{S+2}')
            for i in range(3, 15, 2):
                g(f'v_max3_f32 v{vT}, v{vT}, v{S+i}, v{S+i+1}')
            g(f'v_max_f32 v{vT}, v{vT}, v{S+15}')
            g(f'v_mov_b32 v{vT+1}, v{vT}')
            g('s_nop 1')
            g(f'v_permlane32_swap_b32 v{vT}, v{vT+1}')
            g(f'v_max_f32 v{vT}, v{vT}, v{vT+1}')
            for i in range(16):
                g(f'v_sub_f32 v{NM+i}, 0, v{vT}')
            for i in range(16):
                g(f'v_sub_f32 v{S+i}, v{S+i}, v{vT}')
        lab = f'{R}_sm{t}'
        g(f'{lab}:')
        for i in range(0, 16, 2):
            t0, t1 = vT + 2 + (i % 4), vT + 3 + (i % 4)
            g(f'v_exp_f32 v{t0}, v{S+i}')
            g(f'v_exp_f32 v{t1}, v{S+i+1}')
            if i == 0:
                g('s_nop 0')
                g(f'v_add_f32 v{vT}, v{t0}, v{t1}')
            else:
                g(f'v_add_f32 v{vT}, v{vT}, v{t0}')
                g(f'v_add_f32 v{vT}, v{vT}, v{t1}')
            g(f'v_cvt_pk_bf16_f32 v{P+i//2}, v{t0}, v{t1}')
        if not first:
            g(f'v_cmp_lt_f32 vcc, s{sTHR}, v{vT}')
            g(f's_mov_b32 s{sRET}, {t}')
            g(f's_cbranch_vccnz {R}_rare')
            rare_sites.append((t, lab))
            g(f'v_add_f32 v{vL}, v{vL}, v{vT}')
        else:
            g(f'v_mov_b32 v{vL}, v{vT}')
        if tt == 7:
            g(f'v_mov_b32 v{vT+1}, v{vL}')
            g('s_nop 1')
            g(f'v_permlane32_swap_b32 v{vL}, v{vT+1}')
            g(f'v_add_f32 v{vL}, v{vL}, v{vT+1}')
            g(f'ds_write_b32 v{vPAR}, v{NM}')
            g(f'ds_write_b32 v{vPAR}, v{vL} offset:4')
        g('s_waitcnt lgkmcnt(0)' if tt != 7 else 's_waitcnt lgkmcnt(2)')
        for s in range(2):
            for blk in range(4):
                A = (GV if s == 0 else F) + 4*blk
                c = '0' if (first and s == 0) else vr(OA+16*blk,16)
                g(f'v_mfma_f32_32x32x16_bf16 {vr(OA+16*blk,16)}, {vr(A,4)}, {vr(P+4*s,4)}, {c}')
        if tt == 7:
            g('s_waitcnt lgkmcnt(0)')
    g('s_barrier')
    head_epilogue_b(g, role, 1, HD, args)
    stamp(g, args, 2)
    if args.stamps:
        g('s_waitcnt vmcnt(0) lgkmcnt(0)')
        g(f'''
        s_memrealtime s[68:69]
        s_waitcnt lgkmcnt(0)
        s_cmp_eq_u32 s{sW}, 0
        s_cbranch_scc0 {R}_nost
        s_lshl_b32 s23, s2, 6
        s_add_u32 s23, s23, {STAMP_OFF}
        s_add_u32 s56, s56, s23
        s_addc_u32 s57, s57, 0
        v_mov_b32 v4, s60
        v_mov_b32 v5, s61
        v_mov_b32 v6, s68
        v_mov_b32 v7, s69
        v_mov_b32 v8, s62
        v_mov_b32 v9, s63
        v_mov_b32 v10, s64
        v_mov_b32 v11, s65
        v_mov_b32 v12, s66
        v_mov_b32 v13, s67
        v_mov_b32 v14, 0
        v_mov_b32 v15, 0
        v_mov_b32 v3, 0
        global_store_dwordx4 v3, v[4:7], s[56:57]
        global_store_dwordx4 v3, v[8:11], s[56:57] offset:16
        global_store_dwordx4 v3, v[12:15], s[56:57] offset:32
        {R}_nost:
        ''')
    g('s_endpgm')
    g(f'{R}_rare:')
    g(f'v_max3_f32 v{vT}, v{S}, v{S+1}, v{S+2}')
    for i in range(3, 15, 2):
        g(f'v_max3_f32 v{vT}, v{vT}, v{S+i}, v{S+i+1}')
    g(f'v_max_f32 v{vT}, v{vT}, v{S+15}')
    g(f'v_mov_b32 v{vT+1}, v{vT}')
    g('s_nop 1')
    g(f'v_permlane32_swap_b32 v{vT}, v{vT+1}')
    g(f'v_max_f32 v{vT}, v{vT}, v{vT+1}')
    g(f'v_max_f32 v{vT}, 0, v{vT}')
    g(f'v_sub_f32 v{vT+1}, 0, v{vT}')
    g(f'v_exp_f32 v{vT+1}, v{vT+1}')
    for i in range(16):
        g(f'v_sub_f32 v{S+i}, v{S+i}, v{vT}')
    for i in range(16):
        g(f'v_sub_f32 v{NM+i}, v{NM+i}, v{vT}')
    for i in range(64):
        g(f'v_mul_f32 v{OA+i}, v{OA+i}, v{vT+1}')
    g(f'v_mul_f32 v{vL}, v{vL}, v{vT+1}')
    for t, lab in rare_sites[:-1]:
        g(f's_cmp_eq_u32 s{sRET}, {t}')
        g(f's_cbranch_scc1 {lab}')
    g(f's_branch {rare_sites[-1][1]}')

def head_epilogue_b(g, role, head, HD, args):
    keep = [0, 1] if role == 0 else [2, 3]
    send = [2, 3] if role == 0 else [0, 1]
    T = vT
    g(f'ds_read_b64 {vr(T,2)}, v{vOWN}')
    g('s_waitcnt lgkmcnt(0)')
    g(f'''
    v_min_f32 v{T+2}, v{NM}, v{T}
    v_sub_f32 v{T+3}, v{T+2}, v{NM}
    v_sub_f32 v{T+4}, v{T+2}, v{T}
    v_exp_f32 v{T+3}, v{T+3}
    v_exp_f32 v{T+4}, v{T+4}
    s_nop 0
    v_mul_f32 v{T+5}, v{vL}, v{T+3}
    v_fma_f32 v{T+5}, v{T+1}, v{T+4}, v{T+5}
    v_rcp_f32 v{T+5}, v{T+5}
    s_nop 0
    v_mul_f32 v{T+3}, v{T+3}, v{T+5}
    ''')
    for b in send:
        for i in range(16):
            g(f'v_mul_f32 v{OA+16*b+i}, v{OA+16*b+i}, v{T+3}')
    for j, b in enumerate(send):
        for q in range(4):
            g(f'ds_write_b128 v{vOWN}, {vr(OA+16*b+4*q,4)} offset:{j*4096+q*1024}')
    g('s_waitcnt lgkmcnt(0)\ns_barrier')
    R = F
    for j in range(8):
        g(f'ds_read_b128 {vr(R+4*j,4)}, v{vPAR} offset:{j*1024}')
    for j, b in enumerate(keep):
        g(f's_waitcnt lgkmcnt({4 if j == 0 else 0})')
        for i in range(16):
            g(f'v_fma_f32 v{OA+16*b+i}, v{OA+16*b+i}, v{T+3}, v{R+16*j+i}')
        for i in range(0, 16, 2):
            g(f'v_cvt_pk_bf16_f32 v{P+i//2}, v{OA+16*b+i}, v{OA+16*b+i+1}')
        for s in range(2):
            ks = 2*b + s
            g(f's_add_u32 s{sT2}, s{sOOFF}, {(head*HD*8 + ks)*1024}')
            g.vm(f'buffer_store_dwordx4 {vr(P+4*s,4)}, v{vLANE16}, s[{SO}:{SO+3}], s{sT2} offen', 'ost')
        g('s_nop 1')

def k2(args):
    a = G()
    W, BRs, BAT, RH, CB = 3, 6, 7, 20, 21
    SOs, SWO, SOUT = 8, 12, 16
    a(f'''
    s_cmp_ge_u32 s2, 256
    s_cbranch_scc1 K2_end
    v_lshrrev_b32 v1, 6, v0
    s_and_b32 s22, s2, 7
    v_readfirstlane_b32 s{W}, v1
    s_lshr_b32 s23, s2, 3
    s_and_b32 s{BRs}, s22, 1
    ''')
    if args.map2 == 'Z':
        a(f'''
        s_lshr_b32 s24, s22, 1
        s_and_b32 s24, s24, 1
        s_lshl_b32 s24, s24, 2
        s_and_b32 s{BAT}, s23, 3
        s_add_u32 s{BAT}, s{BAT}, s24
        s_lshr_b32 s{RH}, s23, 2
        s_and_b32 s{RH}, s{RH}, 1
        s_lshr_b32 s24, s22, 2
        s_lshl_b32 s24, s24, 2
        s_lshr_b32 s{CB}, s23, 3
        s_add_u32 s{CB}, s{CB}, s24
        ''')
    else:
        a(f'''
        s_lshr_b32 s24, s22, 1
        s_lshl_b32 s24, s24, 1
        s_and_b32 s{BAT}, s23, 1
        s_add_u32 s{BAT}, s{BAT}, s24
        s_lshr_b32 s{RH}, s23, 1
        s_and_b32 s{RH}, s{RH}, 1
        s_lshr_b32 s{CB}, s23, 2
        ''')
    a(f'''
    s_mul_i32 s24, s{BRs}, 40
    s_add_u32 s46, s0, s24
    s_addc_u32 s47, s1, 0
    s_load_dwordx2 s[48:49], s[46:47], 32
    s_load_dwordx2 s[50:51], s[0:1], 80
    s_load_dwordx2 s[56:57], s[0:1], 96
    v_and_b32 v1, 63, v0
    v_lshlrev_b32 v2, 4, v1
    s_waitcnt lgkmcnt(0)
    ''')
    if args.stamps:
        a('s_memrealtime s[60:61]')
    a(f'''
    s_lshl_b32 s24, s{BRs}, 3
    s_add_u32 s24, s24, s{BAT}
    s_lshl_b32 s24, s24, 20
    s_add_u32 s{SOs}, s56, s24
    s_addc_u32 s{SOs+1}, s57, 0
    s_add_u32 s{SOs}, s{SOs}, {OWS}
    s_addc_u32 s{SOs+1}, s{SOs+1}, 0
    s_mov_b32 s{SOs+2}, 0x100000
    s_mov_b32 s{SOs+3}, 0x20000
    s_mov_b32 s{SWO}, s48
    s_mov_b32 s{SWO+1}, s49
    s_mov_b32 s{SWO+2}, 0x400000
    s_mov_b32 s{SWO+3}, 0x20000
    s_mov_b32 s{SOUT}, s50
    s_mov_b32 s{SOUT+1}, s51
    s_mov_b32 s{SOUT+2}, 0x200000
    s_mov_b32 s{SOUT+3}, 0x20000
    ''')
    a(f'''
    v_and_b32 v10, 31, v1
    v_lshrrev_b32 v11, 5, v1
    v_bfe_u32 v12, v1, 2, 2
    v_and_b32 v13, 3, v1
    v_bfe_u32 v14, v1, 4, 1
    v_and_b32 v15, 1, v13
    v_lshlrev_b32 v15, 1, v15
    v_lshrrev_b32 v16, 1, v13
    v_or_b32 v15, v15, v16
    v_lshlrev_b32 v15, 3, v15
    v_lshl_or_b32 v15, v14, 5, v15
    ''')
    a(f'''
    s_lshl_b32 s25, s{W}, 14
    v_lshl_add_u32 v16, v11, 3, v12
    v_lshlrev_b32 v16, 7, v16
    v_add_u32 v16, s25, v16
    v_add_u32 v16, v16, v15
    v_lshrrev_b32 v17, 1, v12
    v_lshl_add_u32 v4, v17, 6, v16
    v_xor_b32 v17, 1, v17
    v_lshl_add_u32 v5, v17, 6, v16
    ''')
    a(f'''
    v_lshrrev_b32 v16, 3, v1
    v_and_b32 v17, 7, v1
    v_lshlrev_b32 v18, 2, v14
    v_xor_b32 v17, v17, v18
    v_lshlrev_b32 v17, 4, v17
    v_lshl_or_b32 v3, v16, 10, v17
    ''')
    a(f'''
    s_lshl_b32 s26, s{RH}, 19
    s_lshl_b32 s24, s{W}, 15
    s_add_u32 s26, s26, s24
    s_add_u32 s27, s26, 0x40000
    s_lshl_b32 s28, s{W}, 19
    s_lshl_b32 s24, s{CB}, 7
    s_add_u32 s28, s28, s24
    ''')
    D = args.depth2
    OF = 64
    AF = 32
    ACC = 128
    def issue(ks):
        sl = ks % D
        a(f's_add_u32 s30, s26, {ks*1024}')
        a(f's_add_u32 s31, s27, {ks*1024}')
        a.vm(f'buffer_load_dwordx4 {vr(OF+8*sl,4)}, v2, s[{SOs}:{SOs+3}], s30 offen', f'k{ks}')
        a.vm(f'buffer_load_dwordx4 {vr(OF+8*sl+4,4)}, v2, s[{SOs}:{SOs+3}], s31 offen', f'k{ks}')
        for n in range(2):
            a(f's_add_u32 m0, s25, {sl*2048 + n*1024}')
            a(f's_add_u32 s30, s28, {(16*ks + 8*n)*1024}')
            a.vm(f'buffer_load_dwordx4 v3, s[{SWO}:{SWO+3}], s30 offen lds', f'k{ks}')
    assert D <= 8
    for ks in range(D): issue(ks)
    for ks in range(32):
        sl = ks % D
        a.vmwait([f'k{ks}'])
        af = AF + 8*(ks & 1)*1
        af = AF + (ks & 1)*8
        for nb in range(2):
            for t in range(2):
                a(f'ds_read_b64_tr_b16 {vr(af + 4*nb + 2*t, 2)}, v{4+nb} offset:{sl*2048 + t*512}')
        for nb in range(2):
            a(f's_waitcnt lgkmcnt({2 if nb == 0 else 0})')
            for rb in range(2):
                c = vr(ACC+16*(2*nb+rb),16) if ks else '0'
                a(f'v_mfma_f32_32x32x16_bf16 {vr(ACC+16*(2*nb+rb),16)}, {vr(af+4*nb,4)}, {vr(OF+8*sl+4*rb,4)}, {c}')
        if ks + D < 32: issue(ks + D)
    if args.stamps:
        a('s_memrealtime s[62:63]')
    a('s_nop 7\ns_nop 3\ns_barrier')
    a(f'v_add_u32 v6, s25, v2')
    for j in range(16):
        a(f'ds_write_b128 v6, {vr(ACC+4*j,4)} offset:{j*1024}')
    a('s_waitcnt lgkmcnt(0)\ns_barrier')
    a(f'''
    s_lshl_b32 s24, s{W}, 11
    v_add_u32 v6, s24, v2
    v_add_u32 v7, 0x10000, v6
    ''')
    RR = 64
    for p in range(8):
        for q in range(2):
            base = 'v6' if p < 4 else 'v7'
            a(f'ds_read_b128 {vr(RR+8*p+4*q,4)}, {base} offset:{(p%4)*16384 + q*1024}')
    for p in range(1, 8):
        a(f's_waitcnt lgkmcnt({14-2*p})')
        for i in range(8):
            a(f'v_add_f32 v{RR+i}, v{RR+i}, v{RR+8*p+i}')
    for i in range(0, 8, 2):
        a(f'v_cvt_pk_bf16_f32 v{32+i//2}, v{RR+i}, v{RR+i+1}')
    a(f'''
    s_lshr_b32 s24, s{W}, 1
    s_and_b32 s29, s24, 1
    s_lshr_b32 s24, s24, 1
    s_lshl_b32 s29, s29, 5
    s_lshl_b32 s30, s{BAT}, 7
    s_add_u32 s29, s29, s30
    s_lshl_b32 s30, s{RH}, 6
    s_add_u32 s29, s29, s30
    s_lshl_b32 s29, s29, 11
    s_lshl_b32 s24, s24, 6
    s_add_u32 s29, s29, s24
    s_and_b32 s24, s{W}, 1
    s_lshl_b32 s24, s24, 5
    s_add_u32 s29, s29, s24
    s_lshl_b32 s24, s{CB}, 7
    s_add_u32 s29, s29, s24
    s_lshl_b32 s24, s{BRs}, 10
    s_add_u32 s29, s29, s24
    v_lshlrev_b32 v8, 11, v10
    v_lshl_or_b32 v8, v11, 4, v8
    buffer_store_dwordx4 v[32:35], v8, s[{SOUT}:{SOUT+3}], s29 offen
    ''')
    if args.stamps:
        a(f'''
        s_waitcnt vmcnt(0)
        s_memrealtime s[68:69]
        s_waitcnt lgkmcnt(0)
        s_cmp_eq_u32 s{W}, 0
        s_cbranch_scc0 K2_end
        s_lshl_b32 s23, s2, 6
        s_add_u32 s23, s23, {STAMP_OFF + 16384}
        s_add_u32 s56, s56, s23
        s_addc_u32 s57, s57, 0
        v_mov_b32 v4, s60
        v_mov_b32 v5, s61
        v_mov_b32 v6, s68
        v_mov_b32 v7, s69
        v_mov_b32 v8, s62
        v_mov_b32 v9, s63
        v_mov_b32 v10, 0
        v_mov_b32 v11, 0
        v_mov_b32 v3, 0
        global_store_dwordx4 v3, v[4:7], s[56:57]
        global_store_dwordx4 v3, v[8:11], s[56:57] offset:16
        ''')
    a('K2_end:\ns_endpgm')
    return a.text()

def main():
    ap = argparse.ArgumentParser()
    ap.add_argument('-o', default='k_base.s')
    ap.add_argument('--map', default='Z')
    ap.add_argument('--map2', default='Z')
    ap.add_argument('--stamps', action='store_true')
    ap.add_argument('--kv0', type=int, default=1)
    ap.add_argument('--kvevery', type=int, default=2)
    ap.add_argument('--depth2', type=int, default=8)
    args = ap.parse_args()
    t1 = k1(args); t2 = k2(args)
    n1 = 'attn_kernel'; n2 = 'oproj_kernel'
    k1t, k1d = kernel_text(n1, t1, vgpr=256)
    k2t, k2d = kernel_text(n2, t2, vgpr=192)
    txt = file_text([(n1, 256, 512, LDS_BYTES), (n2, 256, 512, 131072)], [(k1t, k1d), (k2t, k2d)])
    open(args.o, 'w').write(txt)
    hazchk.check(t1); hazchk.check(t2)

if __name__ == '__main__':
    main()
```

```python
import sys, argparse, struct
from asmlib import *
import hazchk

LOG2E = 1.4426950408889634
QSCALE = LOG2E / (128 ** 0.5)
def f2u(x): return struct.unpack('<I', struct.pack('<f', x))[0]
def vr(b, n): return f'v[{b}:{b+n-1}]'
def sr(b, n): return f's[{b}:{b+n-1}]'

class G(Asm):
    def __init__(self, args):
        super().__init__()
        self.vmq = []; self.lgq = []; self.fnames = []; self.args = args
    def vm(self, s, tag):
        self(s); self.vmq.append(tag)
    def lg(self, s, tag):
        self(s); self.lgq.append(tag)
    def _wait(self, q, tags, name, mx):
        if isinstance(tags, str): tags = [tags]
        last = -1
        for i, t in enumerate(q):
            if t in tags: last = i
        if last < 0: return q
        n = len(q) - 1 - last
        self(f's_waitcnt {name}({min(n, mx)})')
        return q[last+1:] if n <= mx else q[len(q)-mx:]
    def vmwait(self, tags): self.vmq = self._wait(self.vmq, tags, 'vmcnt', 63)
    def lgwait(self, tags): self.lgq = self._wait(self.lgq, tags, 'lgkmcnt', 15)
    def vmgate(self, n):
        idx = [i for i, t in enumerate(self.vmq) if t.startswith('kv')]
        if len(idx) > n:
            i = idx[len(idx) - n - 1]
            k = len(self.vmq) - 1 - i
            self(f's_waitcnt vmcnt({min(k, 63)})'); self.vmq = self.vmq[i+1:]
    def lgall(self):
        self('s_waitcnt lgkmcnt(0)'); self.lgq = []
    def vmall(self):
        self('s_waitcnt vmcnt(0)'); self.vmq = []
    def roles(self, f0, f1):
        l1 = self.label('R1'); le = self.label('RE')
        vm0, lg0 = list(self.vmq), list(self.lgq)
        self(f's_cmp_eq_u32 s{sROLE}, 0')
        self(f's_cbranch_scc0 {l1}')
        f0(self)
        vmA, lgA = self.vmq, self.lgq
        self(f's_branch {le}')
        self(f'{l1}:')
        self.vmq, self.lgq = list(vm0), list(lg0)
        f1(self)
        assert self.vmq == vmA, (self.vmq, vmA)
        assert self.lgq == lgA, (self.lgq, lgA)
        self(f'{le}:')
    def fine(self, name):
        if not self.args.fine: return
        idx = len(self.fnames)
        if idx >= 64: return
        self.fnames.append(name)
        prs = [70, 78, 80]
        if not hasattr(self, 'fpend'): self.fpend = []
        if len(self.fpend) == 2:
            i0 = self.fpend.pop(0)
            self(f'v_writelane_b32 v250, s{prs[i0 % 3]}, {i0}')
        self(f's_memtime s[{prs[idx % 3]}:{prs[idx % 3]+1}]')
        self.fpend.append(idx)

KS = [0, 16384, 32768]
VBASE = 49152
XB = 98304
LDS_BYTES = 163840
RING = [XB + 8192*i for i in range(8)] + [32768, 40960, 81920, 90112]
RLO = 32768
OWS = 0
THR = 2.0**20
SPIN = 50000

sW, sROLE, sRB = 3, 4, 5
sBR, sBATCH, sH1 = 6, 7, 20
SX, SWQ, SK, SV, SO = 8, 12, 16, 24, 28
sT0, sT1, sT2, sT3 = 32, 33, 34, 35
sKOFF = 36
sXO = [37, 38]; sWO = [39, 40]
sRET = 41; sOOFF = 42; sTHR = 43; sQS = 44
sLW1 = 45
sLW2 = 58
sROT = 59
sXW = 72; sWW = 73
sHS, sOCT = 82, 83
SFL, SIN, SDBG = 88, 92, 96
sWH = [46, 47, 48, 49]
sOH = [50, 51, 52, 53]
sFLA, sFLF, sFLO = 54, 55, 75
sKROT = 74
SOUT, SWO = 8, 12
FLAGOFF = 32 << 20
INOFF = 16 << 20
vKA = 2
vVA = 10
vDK = 14
vDV = 16
vDX = 17
vDW = 18
vL = 19
vT = 20
vOWN, vPAR, vLANE16 = 28, 29, 30
vQX = 31
Q1, Q2 = 32, 64
OA = 96
NM = 160
S = 176
P = 192
F = 200
OF = 216
GV = 232
vDO = vDW
vPA, vPF, vPR, vPR2 = 248, 249, 251, 252
vONE = 253
RF = 32
WF = 176
vXA = S
vWH = S + 4
vWL = S + 8
QF = 200

def setup(g, args):
    g(f'''
    s_cmp_ge_u32 s2, 256
    s_cbranch_scc1 L_end
    s_and_b32 s21, s2, 7
    s_and_b32 s{sBR}, s21, 1
    s_mul_i32 s23, s{sBR}, 40
    s_add_u32 s46, s0, s23
    s_addc_u32 s47, s1, 0
    s_load_dwordx4 s[48:51], s[46:47], 0
    s_load_dwordx4 s[52:55], s[46:47], 16
    s_load_dwordx2 s[56:57], s[0:1], 96
    s_load_dwordx2 s[100:101], s[46:47], 32
    s_load_dwordx4 s[84:87], s[0:1], 80
    ''')
    if args.fine: g('s_memtime s[76:77]')
    if args.stamps: g('s_memrealtime s[60:61]')
    g(f'''
    v_lshrrev_b32 v1, 6, v0
    s_lshr_b32 s22, s2, 3
    v_readfirstlane_b32 s{sW}, v1
    v_and_b32 v1, 63, v0
    v_lshlrev_b32 v{vLANE16}, 4, v1
    ''')
    g(f'''
    s_and_b32 s{sBATCH}, s22, 7
    s_lshr_b32 s{sOCT}, s21, 1
    s_lshl_b32 s23, s{sOCT}, 3
    s_lshr_b32 s{sHS}, s22, 3
    s_add_u32 s{sH1}, s{sHS}, s23
    s_lshl_b32 s{sROT}, s{sHS}, 1
    s_add_u32 s{sROT}, s{sROT}, s{sBATCH}
    ''')
    g(f'''
    s_mul_i32 s23, s{sHS}, {args.trot_hs}
    s_mul_i32 s{sKROT}, s{sBATCH}, {args.trot_b}
    s_add_u32 s{sKROT}, s{sKROT}, s23
    s_mul_i32 s23, s{sOCT}, {args.trot_o}
    s_add_u32 s{sKROT}, s{sKROT}, s23
    s_and_b32 s{sKROT}, s{sKROT}, 7
    s_lshl_b32 s{sKROT}, s{sKROT}, 14
    ''')
    if not args.rot: g(f's_mov_b32 s{sROT}, 0')
    g(f'''
    s_lshr_b32 s{sROLE}, s{sW}, 2
    s_and_b32 s{sRB}, s{sW}, 3
    s_lshl_b32 s{sLW1}, s{sW}, 10
    s_lshl_b32 s{sLW2}, s{sW}, 11
    ''')
    g(f'''
    v_lshrrev_b32 v206, 4, v1
    v_and_b32 v207, 15, v1
    v_lshlrev_b32 v208, 2, v206
    v_xor_b32 v208, v208, v207
    v_lshlrev_b32 v208, 4, v208
    v_lshl_or_b32 v{vDV}, v206, 8, v208
    v_lshl_or_b32 v{vDW}, v206, 13, v208
    s_and_b32 s23, s{sW}, 1
    s_lshl_b32 s22, s23, 2
    v_add_u32 v208, s22, v206
    v_and_b32 v209, 7, v1
    v_xor_b32 v208, v208, v209
    v_lshlrev_b32 v208, 4, v208
    v_lshrrev_b32 v209, 3, v1
    v_lshl_or_b32 v{vDX}, v209, 10, v208
    s_lshl_b32 s22, s23, 3
    ''')
    for n in range(2):
        g(f'''
        v_add_u32 v208, s22, v206
        v_add_u32 v208, {4*n}, v208
        v_xor_b32 v208, v208, v207
        v_lshlrev_b32 v208, 4, v208
        v_lshl_or_b32 v{vDK+n}, v206, 8, v208
        ''')
    g(f'''
    s_lshl_b32 s{sXW}, s{sW}, 13
    s_lshl_b32 s{sWW}, s{sW}, 15
    s_lshl_b32 s23, s{sH1}, 8
    s_add_u32 s{sWW}, s{sWW}, s23
    s_lshl_b32 s{sKOFF}, s{sH1}, 17
    s_add_u32 s{sKOFF}, s{sKOFF}, s{sLW2}
    s_lshl_b32 s{sOOFF}, s{sRB}, 18
    s_lshl_b32 s23, s{sH1}, 13
    s_add_u32 s{sOOFF}, s{sOOFF}, s23
    s_mov_b32 s{sTHR}, {f2u(THR):#x}
    s_mov_b32 s{sQS}, {f2u(QSCALE):#x}
    s_mov_b32 s{SX+2}, 0x20000
    s_mov_b32 s{SX+3}, 0x20000
    s_mov_b32 s{SWQ+2}, 0x400000
    s_mov_b32 s{SWQ+3}, 0x20000
    s_mov_b32 s{SK+2}, 0x400000
    s_mov_b32 s{SK+3}, 0x20000
    s_mov_b32 s{SV+2}, 0x400000
    s_mov_b32 s{SV+3}, 0x20000
    s_mov_b32 s{SO+2}, 0x100000
    s_mov_b32 s{SO+3}, 0x20000
    ''')
    pair_scalars(g, 0); pair_scalars(g, 1)
    g(f'''
    s_lshl_b32 s22, s{sBATCH}, 17
    s_lshl_b32 s23, s{sBATCH}, 22
    s_waitcnt lgkmcnt(0)
    s_add_u32 s{SX}, s48, s22
    s_addc_u32 s{SX+1}, s49, 0
    s_mov_b32 s{SWQ}, s54
    s_mov_b32 s{SWQ+1}, s55
    ''')

def flags_init(g, args):
    lab = g.label('nz')
    g(f'''
    s_add_u32 s{SFL}, s56, {FLAGOFF}
    s_addc_u32 s{SFL+1}, s57, 0
    s_mov_b32 s{SFL+2}, 0x8000
    s_mov_b32 s{SFL+3}, 0x20000
    s_lshl_b32 s21, s{sBR}, 3
    s_add_u32 s21, s21, s{sBATCH}
    s_lshl_b32 s21, s21, 4
    s_lshl_b32 s22, s{sOCT}, 2
    s_add_u32 s22, s22, s21
    s_lshl_b32 s{sFLA}, s22, 7
    s_add_u32 s22, s22, s{sHS}
    s_lshl_b32 s{sFLO}, s22, 7
    s_add_u32 s21, s21, s{sHS}
    s_lshl_b32 s{sFLF}, s21, 7
    s_cmp_eq_u32 s{sW}, 7
    s_cbranch_scc0 {lab}
    v_mov_b32 v252, 0
    v_mov_b32 v253, 0
    v_mov_b32 v254, 0
    v_mov_b32 v255, 0
    v_mov_b32 v251, 0
    s_mov_b64 exec, 1
    buffer_store_dwordx4 v[252:255], v251, s[{SFL}:{SFL+3}], s{sFLO} offen sc1
    s_mov_b64 exec, -1
    {lab}:
    ''')

def init_arrive(g, args):
    lab = g.label('na')
    g(f'''
    s_cmp_eq_u32 s{sW}, 7
    s_cbranch_scc0 {lab}
    v_mov_b32 v251, 0
    v_mov_b32 v252, 1
    s_mov_b64 exec, 1
    buffer_atomic_add v252, v251, s[{SDBG}:{SDBG+3}], 0 offen sc1
    s_mov_b64 exec, -1
    {lab}:
    ''')

def flag_set(g, dword, wave=0):
    lab = g.label('nf')
    g(f'''
    s_cmp_eq_u32 s{sW}, {wave}
    s_cbranch_scc0 {lab}
    v_mov_b32 v254, 0
    v_mov_b32 v255, 1
    s_mov_b64 exec, 1
    buffer_store_dword v255, v254, s[{SFL}:{SFL+3}], s{sFLO} offen offset:{4*dword} sc1
    s_mov_b64 exec, -1
    {lab}:
    ''')

def poll_issue(g, kind, tag, dst=None):
    dst = dst or vPR
    if kind == 'init':
        g.vm(f'buffer_load_dword v{dst}, v{vPA}, s[{SDBG}:{SDBG+3}], 0 offen sc1', tag)
    elif kind == 'f1':
        g.vm(f'buffer_load_dword v{dst}, v{vPA}, s[{SFL}:{SFL+3}], s{sFLA} offen sc1', tag)
    elif kind == 'f2':
        g.vm(f'buffer_load_dword v{dst}, v{vPA}, s[{SFL}:{SFL+3}], s{sFLA} offen offset:4 sc1', tag)
    elif kind == 'ff':
        g.vm(f'buffer_load_dword v{dst}, v{vPF}, s[{SFL}:{SFL+3}], s{sFLF} offen offset:8 sc1', tag)

def poll_check(g, kind, tag, dst=None):
    dst = dst or vPR
    g.vmwait(tag)
    ok = g.label('pok'); lp = g.label('plp')
    want = 256 if kind == 'init' else 1
    g(f's_mov_b32 s{sT3}, 0')
    g(f'{lp}:')
    if kind == 'init':
        g(f'v_readfirstlane_b32 s{sT2}, v{dst}')
        g(f's_cmp_eq_u32 s{sT2}, {want}')
        g(f's_cbranch_scc1 {ok}')
    else:
        g(f'v_cmp_ne_u32 vcc, {want}, v{dst}')
        g(f's_cbranch_vccz {ok}')
    g(f's_add_u32 s{sT3}, s{sT3}, 1')
    g(f's_cmp_ge_u32 s{sT3}, {SPIN}')
    g(f's_cbranch_scc1 {ok}')
    q = list(g.vmq)
    poll_issue(g, kind, tag, dst)
    g.vmq = q
    g('s_waitcnt vmcnt(0)')
    g(f's_branch {lp}')
    g(f'{ok}:')

def setup2(g, args):
    g(f'''
    s_add_u32 s{SK}, s50, s23
    s_addc_u32 s{SK+1}, s51, 0
    s_add_u32 s{SV}, s52, s23
    s_addc_u32 s{SV+1}, s53, 0
    s_lshl_b32 s23, s{sBR}, 3
    s_add_u32 s23, s23, s{sBATCH}
    s_lshl_b32 s23, s23, 20
    s_add_u32 s{SO}, s56, s23
    s_addc_u32 s{SO+1}, s57, 0
    ''')
    g(f'''
    v_and_b32 v240, 31, v1
    v_lshrrev_b32 v241, 5, v1
    v_bfe_u32 v242, v1, 2, 2
    v_and_b32 v243, 3, v1
    v_bfe_u32 v244, v1, 4, 1
    v_and_b32 v245, 1, v243
    v_lshlrev_b32 v245, 1, v245
    v_lshrrev_b32 v246, 1, v243
    v_or_b32 v245, v245, v246
    v_lshlrev_b32 v245, 3, v245
    v_lshl_or_b32 v245, v244, 5, v245
    ''')
    g(f'''
    v_lshl_add_u32 v246, v241, 3, v242
    v_lshlrev_b32 v246, 8, v246
    v_add_u32 v246, v246, v245
    s_lshl_b32 s23, s{sROLE}, 13
    v_add_u32 v246, s23, v246
    ''')
    for blk in range(4):
        g(f'''
        v_xor_b32 v247, {blk}, v242
        v_lshl_add_u32 v247, v247, 6, v246
        v_add_u32 v{vWH+blk}, {XB}, v247
        v_add_u32 v{vWL+blk}, {RLO}, v247
        ''')
    g(f'''
    s_and_b32 s23, s{sRB}, 1
    s_lshl_b32 s23, s23, 5
    v_add_u32 v246, s23, v240
    v_bfe_u32 v247, v246, 1, 3
    v_xor_b32 v247, v247, v241
    v_lshlrev_b32 v247, 4, v247
    v_lshl_or_b32 v247, v246, 7, v247
    s_lshr_b32 s23, s{sRB}, 1
    s_lshl_b32 s23, s23, 13
    s_add_u32 s23, s23, {XB}
    v_add_u32 v{vXA}, s23, v247
    ''')
    for s in range(1, 4):
        g(f'v_xor_b32 v{vXA+s}, {s<<5}, v{vXA}')
    g(f'''
    s_lshl_b32 s23, s{sROLE}, 5
    v_add_u32 v246, s23, v240
    v_and_b32 v247, 15, v240
    v_xor_b32 v247, v247, v241
    v_lshlrev_b32 v247, 4, v247
    v_lshl_or_b32 v{vKA}, v246, 8, v247
    ''')
    for ks in range(1, 8):
        g(f'v_xor_b32 v{vKA+ks}, {ks<<5}, v{vKA}')
    g(f'''
    v_lshl_add_u32 v246, v241, 2, v242
    v_add_u32 v246, s23, v246
    v_lshlrev_b32 v246, 8, v246
    v_add_u32 v246, {VBASE}, v246
    v_add_u32 v246, v246, v245
    ''')
    for blk in range(4):
        g(f'''
        v_xor_b32 v247, {blk}, v242
        v_lshl_add_u32 v{vVA+blk}, v247, 6, v246
        ''')
    g(f'''
    s_lshl_b32 s23, s{sW}, 13
    s_add_u32 s23, s23, {XB}
    v_add_u32 v{vOWN}, s23, v{vLANE16}
    s_xor_b32 s23, s{sW}, 4
    s_lshl_b32 s23, s23, 13
    s_add_u32 s23, s23, {XB}
    v_add_u32 v{vPAR}, s23, v{vLANE16}
    s_lshl_b32 s23, s{sRB}, 13
    s_add_u32 s23, s23, {XB}
    v_add_u32 v{vQX}, s23, v{vLANE16}
    ''')
    g(f'''
    s_add_u32 s{SIN}, s56, {INOFF}
    s_addc_u32 s{SIN+1}, s57, 0
    s_mov_b32 s{SIN+2}, 0x1000000
    s_mov_b32 s{SIN+3}, 0x20000
    s_mov_b32 s{SDBG}, s86
    s_mov_b32 s{SDBG+1}, s87
    s_mov_b32 s{SDBG+2}, 256
    s_mov_b32 s{SDBG+3}, 0x20000
    v_and_b32 v{vPA}, 3, v1
    v_lshlrev_b32 v{vPF}, 9, v{vPA}
    v_lshlrev_b32 v{vPA}, 7, v{vPA}
    ''')
    g(f'''
    s_and_b32 s21, s{sW}, 1
    s_lshl_b32 s21, s21, 1
    s_bfe_u32 s22, s{sW}, 0x10001
    s_or_b32 s21, s21, s22
    s_and_b32 s22, s{sW}, 4
    s_or_b32 s21, s21, s22
    s_lshl_b32 s21, s21, 12
    s_lshl_b32 s22, s{sHS}, 8
    s_add_u32 s21, s21, s22
    s_lshl_b32 s22, s{sRB}, 18
    s_lshl_b32 s23, s{sROLE}, 12
    s_add_u32 s22, s22, s23
    ''')
    for i in range(4):
        g(f'''
        s_add_u32 s23, s{sHS}, {1+i}
        s_and_b32 s23, s23, 3
        s_lshl_b32 s{sT2}, s{sOCT}, 3
        s_add_u32 s23, s23, s{sT2}
        s_lshl_b32 s{sWH[i]}, s23, 17
        s_add_u32 s{sWH[i]}, s{sWH[i]}, s21
        s_lshl_b32 s{sOH[i]}, s23, 13
        s_add_u32 s{sOH[i]}, s{sOH[i]}, s22
        ''')

def pair_scalars(g, j):
    p = j & 1
    g(f'''
    s_add_u32 s{sT3}, s{sROT}, {j}
    s_and_b32 s{sT3}, s{sT3}, 7
    s_lshl_b32 s{sXO[p]}, s{sT3}, 7
    s_add_u32 s{sXO[p]}, s{sXO[p]}, s{sXW}
    s_lshl_b32 s{sWO[p]}, s{sT3}, 19
    s_add_u32 s{sWO[p]}, s{sWO[p]}, s{sWW}
    ''')

def q_piece(g, n, HD):
    j, kind = divmod(n, 6)
    slot = RING[n % 12]
    g(f's_add_u32 m0, s{sLW1}, {slot}')
    if kind < 2:
        g(f's_add_u32 s{sT0}, s{sXO[j&1]}, {kind*65536}')
        g.vm(f'buffer_load_dwordx4 v{vDX}, {sr(SX,4)}, s{sT0} offen lds', f'q{n}')
    else:
        sub, hd = divmod(kind - 2, 2)
        g(f's_add_u32 s{sT0}, s{sWO[j&1]}, {sub*32*8192 + hd*HD*256}')
        g.vm(f'buffer_load_dwordx4 v{vDW}, {sr(SWQ,4)}, s{sT0} offen lds', f'q{n}')

def kv_instr(g, t, i, HD, gate=None):
    slot = t % 3
    n = i & 1
    if i < 2: g(f's_add_u32 m0, s{sLW2}, {KS[slot]}')
    else: g(f's_add_u32 m0, s{sLW2}, {VBASE + slot*16384}')
    k = len(g.lines)
    if i == 0:
        g(f's_add_u32 s{sT1}, s{sKROT}, {(t % 8) * 16384}')
        g(f's_and_b32 s{sT1}, s{sT1}, 0x1ffff')
        if t >= 8: g(f's_add_u32 s{sT1}, s{sT1}, {HD * 131072}')
        g(f's_add_u32 s{sT1}, s{sT1}, s{sKOFF}')
    if gate is not None: g.vmgate(gate)
    if len(g.lines) == k: g('s_nop 0')
    if i < 2:
        g.vm(f'buffer_load_dwordx4 v{vDK+n}, {sr(SK,4)}, s{sT1} offen offset:{n*1024} nt lds', f'kv{t}')
    else:
        g.vm(f'buffer_load_dwordx4 v{vDV}, {sr(SV,4)}, s{sT1} offen offset:{n*1024} nt lds', f'kv{t}')

def qphase(g, args, HD):
    def need_it(n):
        j, kind = divmod(n, 6)
        return 2*j + (1 if kind >= 4 else 0)
    def allowed(n):
        if n < 12: return -1
        j, kind = divmod(n - 12, 6)
        rel = 2*j + (0 if kind in (2, 3) else 1)
        return 2*rel + 1 + 2*args.lag
    pend = list(range(6, 48))
    kvq = [(t, i) for t in range(2) for i in range(4)]
    kv_at = [int(x) for x in args.kvq.split(',')]
    assert len(kv_at) == 8
    scal_done = {0, 1}
    def fill(half, maxn):
        out = []
        for _ in range(kv_at.count(half)):
            t, i = kvq.pop(0)
            out.append(lambda t=t, i=i: kv_instr(g, t, i, HD))
        cand = sorted([n for n in pend if allowed(n) <= half], key=lambda n: (need_it(n), n))
        for n in cand[:max(0, maxn - len(out))]:
            assert half <= 2*(need_it(n) - 1), ('late piece', n, half)
            pend.remove(n)
            def f(n=n):
                j = n // 6
                if j not in scal_done:
                    assert all((m // 6) != j - 2 for m in pend), (n, pend[:8])
                    pair_scalars(g, j); scal_done.add(j)
                q_piece(g, n, HD)
            out.append(f)
        return out
    for n in range(6): q_piece(g, n, HD)
    g.fine('q_issued')
    flags_init(g, args)
    setup2(g, args)
    def xread(it, s, buf):
        j = it // 2
        sp = 2*(it & 1) + s
        off = RING[(6*j) % 12] - XB
        g.lg(f'ds_read_b128 {vr(QF+20*buf,4)}, v{vXA+sp} offset:{off}', f'x{it}_{s}')
    def wread(it, s, blk):
        j = it // 2
        n = 6*j + 2 + 2*(it & 1)
        slot = RING[n % 12]
        if slot >= XB: base, off = vWH, slot - XB
        else: base, off = vWL, slot - RLO
        for t in range(2):
            d = QF + 20*s + 4 + 4*blk + 2*t
            g.lg(f'ds_read_b64_tr_b16 {vr(d,2)}, v{base+blk} offset:{off + 4096*s + 1024*t}', f'w{it}_{s}_{blk}')
    def needs(it):
        return [f'q{n}' for n in range(48) if need_it(n) == it]
    g.vmwait(needs(0))
    g('s_barrier')
    g.fine('q_bar0')
    xread(0, 0, 0)
    for b in range(4): wread(0, 0, b)
    for it in range(16):
        fl = fill(2*it, args.qfill)
        for b in range(4):
            g.lgwait([f'x{it}_0', f'w{it}_0_{b}'])
            c = vr(OA+16*b,16) if it else '0'
            g(f'v_mfma_f32_32x32x16_bf16 {vr(OA+16*b,16)}, {vr(QF+4+4*b,4)}, {vr(QF,4)}, {c}')
            if b == 0: xread(it, 1, 1)
            wread(it, 1, b)
            if fl and b < 3: fl.pop(0)()
        for f in fl: f()
        if not args.lag: g.lgall()
        assert all(need_it(n) > it + 1 for n in pend), ('unissued', it, pend[:4])
        if it < 15: g.vmwait(needs(it+1))
        if args.fine == 1: g.fine(f'q{it}_w')
        g('s_barrier')
        if it == 1: init_arrive(g, args)
        if args.fine == 1: g.fine(f'q{it}_b')
        fl = fill(2*it+1, args.qfill)
        for b in range(4):
            g.lgwait([f'x{it}_1', f'w{it}_1_{b}'])
            g(f'v_mfma_f32_32x32x16_bf16 {vr(OA+16*b,16)}, {vr(QF+24+4*b,4)}, {vr(QF+20,4)}, {vr(OA+16*b,16)}')
            if it < 15:
                if b == 0: xread(it+1, 0, 0)
                wread(it+1, 0, b)
            if fl and b < 3: fl.pop(0)()
        for f in fl: f()
    assert not pend and not kvq, (pend, kvq)

def q_epilogue(g, args):
    g('s_nop 7\ns_nop 3')
    def cvt(Q):
        for blk in range(4):
            for i in range(0, 16, 2):
                r = OA + 16*blk + i
                g(f'v_pk_mul_f32 {vr(r,2)}, {vr(r,2)}, s[{sQS}:{sQS+1}] op_sel_hi:[1,0]')
            for i in range(0, 16, 2):
                r = OA + 16*blk + i
                g(f'v_cvt_pk_bf16_f32 v{Q+8*blk+i//2}, v{r}, v{r+1}')
    def r0(g):
        cvt(Q1)
        g('s_nop 0')
        for ks in range(8):
            g(f'ds_write_b128 v{vQX}, {vr(Q1+4*ks,4)} offset:{ks*1024}')
        g('s_waitcnt lgkmcnt(0)')
    def r1(g):
        cvt(Q2)
    g.roles(r0, r1)

def softmax_first(g):
    g(f'v_max3_f32 v{vT}, v{S}, v{S+1}, v{S+2}')
    for i in range(3, 15, 2):
        g(f'v_max3_f32 v{vT}, v{vT}, v{S+i}, v{S+i+1}')
    g(f'v_max_f32 v{vT}, v{vT}, v{S+15}')
    g(f'v_mov_b32 v{vT+1}, v{vT}')
    g('s_nop 1')
    g(f'v_permlane32_swap_b32 v{vT}, v{vT+1}')
    g(f'v_max_f32 v{vT}, v{vT}, v{vT+1}')
    for i in range(16):
        g(f'v_sub_f32 v{NM+i}, 0, v{vT}')
    for i in range(16):
        g(f'v_sub_f32 v{S+i}, v{S+i}, v{vT}')

def attn_step(g, t, args, HD, rare_sites, fillers, post=None):
    head = t // 8; tt = t % 8
    Q = Q1 if head == 0 else Q2
    slot = t % 3
    first = tt == 0
    def fl(k):
        for f in fillers.get(k, []): f()
    def kread(ks):
        g.lg(f'ds_read_b128 {vr(F+4*(ks%4),4)}, v{vKA+ks} offset:{KS[slot]}', f'k{ks}')
    def vread(s, blk):
        for t2 in range(2):
            d = (GV if s == 0 else F) + 4*blk + 2*t2
            g.lg(f'ds_read_b64_tr_b16 {vr(d,2)}, v{vVA+blk} offset:{slot*16384 + 4096*s + 2048*t2}', f'v{s}{blk}')
    for ks in range(4): kread(ks)
    fl('pre')
    for ks in range(8):
        g.lgwait(f'k{ks}')
        c = '0' if (first and ks == 0) else (vr(NM,16) if ks == 0 else vr(S,16))
        g(f'v_mfma_f32_32x32x16_bf16 {vr(S,16)}, {vr(F+4*(ks%4),4)}, {vr(Q+4*ks,4)}, {c}')
        if 1 <= ks <= 4: kread(ks+3)
        if ks < 4: vread(0, ks)
        if ks >= 5: vread(1, ks-5)
        fl(ks)
    g('s_nop 1')
    vread(1, 3)
    g('s_nop 7')
    if first: softmax_first(g)
    lab = f'L_sm{t}'
    g(f'{lab}:')
    for i in range(0, 16, 2):
        t0, t1 = vT + 2 + (i % 4), vT + 3 + (i % 4)
        g(f'v_exp_f32 v{t0}, v{S+i}')
        g(f'v_exp_f32 v{t1}, v{S+i+1}')
        if i == 0:
            g('s_nop 0')
            g(f'v_add_f32 v{vT}, v{t0}, v{t1}')
        else:
            g(f'v_add_f32 v{vT}, v{vT}, v{t0}')
            g(f'v_add_f32 v{vT}, v{vT}, v{t1}')
        g(f'v_cvt_pk_bf16_f32 v{P+i//2}, v{t0}, v{t1}')
    if not first:
        g(f'v_cmp_lt_f32 vcc, s{sTHR}, v{vT}')
        g(f's_mov_b32 s{sRET}, {t}')
        g(f's_cbranch_vccnz L_rare')
        rare_sites.append((t, lab))
        g(f'v_add_f32 v{vL}, v{vL}, v{vT}')
    else:
        g(f'v_mov_b32 v{vL}, v{vT}')
    fl('sm')
    if tt == 7:
        g(f'v_mov_b32 v{vT+1}, v{vL}')
        g('s_nop 1')
        g(f'v_permlane32_swap_b32 v{vL}, v{vT+1}')
        g(f'v_add_f32 v{vL}, v{vL}, v{vT+1}')
        g.lg(f'ds_write_b32 v{vPAR}, v{NM}', 'st')
        g.lg(f'ds_write_b32 v{vPAR}, v{vL} offset:4', 'st')
    for s in range(2):
        for blk in range(4):
            g.lgwait(f'v{s}{blk}')
            A = (GV if s == 0 else F) + 4*blk
            c = '0' if (first and s == 0) else vr(OA+16*blk,16)
            g(f'v_mfma_f32_32x32x16_bf16 {vr(OA+16*blk,16)}, {vr(A,4)}, {vr(P+4*s,4)}, {c}')
            fl(8 + 4*s + blk)
    if post: post()
    g.lgall()

def rare_path(g, rare_sites):
    g('L_rare:')
    g(f'v_max3_f32 v{vT}, v{S}, v{S+1}, v{S+2}')
    for i in range(3, 15, 2):
        g(f'v_max3_f32 v{vT}, v{vT}, v{S+i}, v{S+i+1}')
    g(f'v_max_f32 v{vT}, v{vT}, v{S+15}')
    g(f'v_mov_b32 v{vT+1}, v{vT}')
    g('s_nop 1')
    g(f'v_permlane32_swap_b32 v{vT}, v{vT+1}')
    g(f'v_max_f32 v{vT}, v{vT}, v{vT+1}')
    g(f'v_max_f32 v{vT}, 0, v{vT}')
    g(f'v_sub_f32 v{vT+1}, 0, v{vT}')
    g(f'v_exp_f32 v{vT+1}, v{vT+1}')
    for i in range(16):
        g(f'v_sub_f32 v{S+i}, v{S+i}, v{vT}')
    for i in range(16):
        g(f'v_sub_f32 v{NM+i}, v{NM+i}, v{vT}')
    for i in range(64):
        g(f'v_mul_f32 v{OA+i}, v{OA+i}, v{vT+1}')
    g(f'v_mul_f32 v{vL}, v{vL}, v{vT+1}')
    for t, lab in rare_sites[:-1]:
        g(f's_cmp_eq_u32 s{sRET}, {t}')
        g(f's_cbranch_scc1 {lab}')
    g(f's_branch {rare_sites[-1][1]}')

def head_epilogue(g, head, HD, args, fillers=(), fillers2=()):
    fillers = list(fillers)
    T = vT
    g(f'ds_read_b64 {vr(T,2)}, v{vOWN}')
    for f in fillers: f()
    g('s_waitcnt lgkmcnt(0)')
    g(f'''
    v_min_f32 v{T+2}, v{NM}, v{T}
    v_sub_f32 v{T+3}, v{T+2}, v{NM}
    v_sub_f32 v{T+4}, v{T+2}, v{T}
    v_exp_f32 v{T+3}, v{T+3}
    v_exp_f32 v{T+4}, v{T+4}
    s_nop 0
    v_mul_f32 v{T+5}, v{vL}, v{T+3}
    v_fma_f32 v{T+5}, v{T+1}, v{T+4}, v{T+5}
    v_rcp_f32 v{T+5}, v{T+5}
    s_nop 0
    v_mul_f32 v{T+4}, v{T+3}, v{T+5}
    v_mul_f32 v{T+5}, v{T+3}, v{T+5}
    ''')
    def part(role):
        def f(g):
            keep = [0, 1] if role == 0 else [2, 3]
            send = [2, 3] if role == 0 else [0, 1]
            for j, b in enumerate(send):
                for q in range(4):
                    r = OA + 16*b + 4*q
                    g(f'v_pk_mul_f32 {vr(r,2)}, {vr(r,2)}, {vr(T+4,2)}')
                    g(f'v_pk_mul_f32 {vr(r+2,2)}, {vr(r+2,2)}, {vr(T+4,2)}')
                    g(f'ds_write_b128 v{vOWN}, {vr(r,4)} offset:{j*4096+q*1024}')
            for f in fillers2: f()
            g('s_waitcnt lgkmcnt(0)\ns_barrier')
            RB_ = [F, GV]
            DST = OF if head == 0 else NM
            for j in range(8):
                g(f'ds_read_b128 {vr(RB_[j//4]+4*(j%4),4)}, v{vPAR} offset:{j*1024}')
            for j, b in enumerate(keep):
                for q in range(4):
                    g(f's_waitcnt lgkmcnt({7-(4*j+q)})')
                    r = OA + 16*b + 4*q
                    g(f'v_pk_fma_f32 {vr(r,2)}, {vr(r,2)}, {vr(T+4,2)}, {vr(RB_[j]+4*q,2)}')
                    g(f'v_pk_fma_f32 {vr(r+2,2)}, {vr(r+2,2)}, {vr(T+4,2)}, {vr(RB_[j]+4*q+2,2)}')
                    pp = DST + 8*j + 2*q
                    g(f'v_cvt_pk_bf16_f32 v{pp}, v{r}, v{r+1}')
                    g(f'v_cvt_pk_bf16_f32 v{pp+1}, v{r+2}, v{r+3}')
                for s in range(2):
                    ks = 2*b + s
                    pp = DST + 8*j
                    g(f's_add_u32 s{sT2}, s{sOOFF}, {(head*HD*8 + ks)*1024}')
                    g.vm(f'buffer_store_dwordx4 {vr(pp+4*s,4)}, v{vLANE16}, {sr(SO,4)}, s{sT2} offen{args.ost}', 'ost')
        return f
    g.roles(part(0), part(1))
    g('s_nop 1')


WSLOT = [XB + 8192*i for i in range(8)] + [0, 8192, 49152, 57344] + [16384 + 8192*i for i in range(4)] + [65536 + 8192*i for i in range(4)] \
        + [XB + 8192*i for i in range(8)] + [0, 8192, 49152, 57344]
def op_iter(it):
    if it < 8: return it >> 1, 0, it & 1
    if it < 10: return 3, 1, it & 1
    return (it - 10) >> 1, 1, it & 1

def wo_piece(g, p):
    it, r = divmod(p, 2)
    i, rnd, u = op_iter(it)
    g(f's_add_u32 m0, s{sLW1}, {WSLOT[p]}')
    g(f's_add_u32 s{sT0}, s{sWH[i]}, {rnd*4*131072 + r*65536 + u*32768}')
    g.vm(f'buffer_load_dwordx4 v{vDO}, {sr(SWO,4)}, s{sT0} offen lds', f'p{p}')

def o_load(g, i, rnd, ks):
    if rnd:
        g(f's_add_u32 s{sT2}, s{sOH[i]}, {4*8192}'); so = sT2
    else: so = sOH[i]
    g.vm(f'buffer_load_dwordx4 {vr(RF+16*i+4*ks,4)}, v{vLANE16}, {sr(SO,4)}, s{so} offen offset:{ks*1024} sc1', f'o{rnd}_{i}_{ks}')

def post_q(g, args):
    g(f'''
    s_mov_b32 s{SWO}, s100
    s_mov_b32 s{SWO+1}, s101
    s_mov_b32 s{SWO+2}, 0x400000
    s_lshl_b32 s21, s{sBATCH}, 18
    s_add_u32 s{SOUT}, s84, s21
    s_addc_u32 s{SOUT+1}, s85, 0
    s_mov_b32 s{SOUT+2}, 0x40000
    v_lshrrev_b32 v{vT}, 8, v{vLANE16}
    v_lshrrev_b32 v{vT+1}, 4, v{vLANE16}
    v_and_b32 v{vT+1}, 15, v{vT+1}
    v_lshlrev_b32 v{vT+2}, 2, v{vT}
    v_xor_b32 v{vT+2}, v{vT+2}, v{vT+1}
    v_lshlrev_b32 v{vT+2}, 4, v{vT+2}
    v_lshl_or_b32 v{vDO}, v{vT}, 10, v{vT+2}
    ''')

def switch_exchange(g):
    g(f'''
    s_lshl_b32 s21, s{sROLE}, 14
    s_add_u32 s22, s21, {(16384 - XB) & 0xffffffff:#x}
    s_sub_u32 s23, {(32768 - XB) & 0xffffffff:#x}, s21
    v_add_u32 v{vOWN}, s22, v{vOWN}
    v_add_u32 v{vPAR}, s23, v{vPAR}
    ''')

def tail(g, args):
    vA, vB, vC = vKA, vKA + 4, vVA
    def wread(n, blk):
        it, s = divmod(n, 2)
        slot = WSLOT[2*it]
        if slot >= XB: base, off = vC, slot - XB
        elif slot >= 65536: base, off = vB, slot - 65536
        else: base, off = vA, slot
        for t2 in range(2):
            d = WF + 16*(n & 1) + 4*blk + 2*t2
            g.lg(f'ds_read_b64_tr_b16 {vr(d,2)}, v{base+blk} offset:{off + 4096*s + 2048*t2}', f'w{n}_{blk}')
    def bfrag(n):
        it, s = divmod(n, 2)
        i, rnd, u = op_iter(it)
        ks = 2*u + s
        if i == 3: return (OF if rnd == 0 else NM) + 4*ks, None
        return RF + 16*i + 4*ks, f'o{rnd}_{i}_{ks}'
    side = {n: [] for n in range(32)}
    E2, BA, BB, BC = args.tE2, 11, 19, 27
    for k, p in enumerate(range(12, 20)): side[E2 + k//3].append(lambda p=p: wo_piece(g, p))
    side[args.tpoll].append(lambda: poll_issue(g, 'f2', 'pf2'))
    for k, p in enumerate(range(20, 28)): side[BA + k//3].append(lambda p=p: wo_piece(g, p))
    oc = args.tchk
    lo = [(i, ks) for i in range(3) for ks in range(4)]
    for k, (i, ks) in enumerate(lo): side[oc + k//4].append(lambda i=i, ks=ks: o_load(g, i, 1, ks))
    for k, p in enumerate(range(28, 32)): side[oc + 3 + k//3].append(lambda p=p: wo_piece(g, p))
    assert oc + 3 + 1 < BC and oc >= 14
    for blk in range(4): wread(0, blk)
    for n in range(32):
        if n == E2:
            g.vmwait('ost')
            g('s_barrier')
            flag_set(g, 1)
            if args.fine == 2: g.fine('tE2')
        if n == BA:
            g.vmwait([f'p{p}' for p in range(12, 20)]); g.lgall(); g('s_barrier')
            if args.fine == 2: g.fine('tBA')
        if n == BB:
            g.vmwait([f'p{p}' for p in range(20, 28)]); g('s_barrier')
            if args.fine == 2: g.fine('tBB')
        if n == BC:
            g.vmwait([f'p{p}' for p in range(28, 32)]); g('s_barrier')
            if args.fine == 2: g.fine('tBC')
        if n == oc:
            poll_check(g, 'f2', 'pf2')
            if args.fine == 2: g.fine('tchk')
        B, tag = bfrag(n)
        if tag: g.vmwait(tag)
        fl = list(side[n])
        for blk in range(4):
            g.lgwait(f'w{n}_{blk}')
            c = vr(OA+16*blk,16) if n else '0'
            g(f'v_mfma_f32_32x32x16_bf16 {vr(OA+16*blk,16)}, {vr(WF+16*(n&1)+4*blk,4)}, {vr(B,4)}, {c}')
            if n < 31: wread(n+1, blk)
            if fl: fl.pop(0)()
        for f in fl: f()
    if args.fine == 2: g.fine('top')
    g(f'''
    s_lshl_b32 s21, s{sW}, 13
    s_add_u32 s22, s21, 65536
    v_add_u32 v{vOWN}, s22, v{vLANE16}
    s_xor_b32 s21, s21, {4 << 13}
    s_add_u32 s22, s21, 65536
    v_add_u32 v{vPAR}, s22, v{vLANE16}
    s_lshl_b32 s21, s{sBR}, 3
    s_add_u32 s21, s21, s{sBATCH}
    s_lshl_b32 s21, s21, 2
    s_add_u32 s21, s21, s{sHS}
    s_lshl_b32 s21, s21, 18
    s_lshl_b32 s22, s{sRB}, 16
    s_lshl_b32 s23, s{sOCT}, 14
    s_add_u32 s22, s22, s23
    s_lshl_b32 s23, s{sROLE}, 13
    s_add_u32 s22, s22, s23
    s_add_u32 s22, s22, s21
    s_nop 7
    ''')
    RB_ = [F, GV]
    def part(role):
        def f(g):
            keep = [0, 1] if role == 0 else [2, 3]
            send = [2, 3] if role == 0 else [0, 1]
            for j, b in enumerate(send):
                for q in range(4):
                    g(f'ds_write_b128 v{vOWN}, {vr(OA+16*b+4*q,4)} offset:{j*4096+q*1024}')
            g('s_waitcnt lgkmcnt(0)\ns_barrier')
            for j in range(8):
                g(f'ds_read_b128 {vr(RB_[j//4]+4*(j%4),4)}, v{vPAR} offset:{j*1024}')
            own = g.label('own'); done = g.label('sent')
            g(f's_cmp_eq_u32 s{sRB}, s{sOCT}')
            g(f's_cbranch_scc1 {own}')
            for j, b in enumerate(keep):
                if j: g(f's_add_u32 s22, s22, 4096')
                for q in range(4):
                    g(f's_waitcnt lgkmcnt({7-(4*j+q)})')
                    r = OA + 16*b + 4*q
                    g(f'v_pk_add_f32 {vr(r,2)}, {vr(r,2)}, {vr(RB_[j]+4*q,2)}')
                    g(f'v_pk_add_f32 {vr(r+2,2)}, {vr(r+2,2)}, {vr(RB_[j]+4*q+2,2)}')
                    g(f'buffer_store_dwordx4 {vr(r,4)}, v{vLANE16}, {sr(SIN,4)}, s22 offen offset:{q*1024} sc1')
            g(f's_branch {done}')
            g(f'{own}:')
            g(f's_lshl_b32 s23, s{sROLE}, 13')
            g(f'v_add_u32 v{vT}, s23, v{vLANE16}')
            for j, b in enumerate(keep):
                for q in range(4):
                    g(f's_waitcnt lgkmcnt({7-(4*j+q)})')
                    r = OA + 16*b + 4*q
                    g(f'v_pk_add_f32 {vr(r,2)}, {vr(r,2)}, {vr(RB_[j]+4*q,2)}')
                    g(f'v_pk_add_f32 {vr(r+2,2)}, {vr(r+2,2)}, {vr(RB_[j]+4*q+2,2)}')
                    g(f'ds_write_b128 v{vT}, {vr(r,4)} offset:{j*4096+q*1024}')
            g(f'{done}:')
        return f
    g.lgq = []
    g.roles(part(0), part(1))
    g('s_waitcnt vmcnt(0) lgkmcnt(0)'); g.vmq = []; g.lgq = []
    g('s_barrier')
    flag_set(g, 2)
    if args.fine == 2: g.fine('tsent')
    g(f'''
    s_lshl_b32 s23, s{sW}, 11
    v_add_u32 v{vT}, s23, v{vLANE16}
    ds_read_b128 {vr(S,4)}, v{vT}
    ds_read_b128 {vr(S+4,4)}, v{vT} offset:1024
    s_lshl_b32 s22, s{sOCT}, 16
    s_add_u32 s21, s21, s22
    s_add_u32 s21, s21, s23
    v_and_b32 v{vT+1}, 0x1f0, v{vLANE16}
    v_lshlrev_b32 v{vT+1}, 7, v{vT+1}
    v_lshrrev_b32 v{vT+2}, 9, v{vLANE16}
    v_lshl_or_b32 v{vT+1}, v{vT+2}, 4, v{vT+1}
    ''')
    poll_issue(g, 'ff', 'pff')
    poll_check(g, 'ff', 'pff')
    if args.fine == 2: g.fine('tff')
    for k in range(3):
        g(f'''
        s_add_u32 s22, s{sOCT}, {k+1}
        s_and_b32 s22, s22, 3
        s_lshl_b32 s22, s22, 14
        s_add_u32 s22, s22, s21
        ''')
        g.vm(f'buffer_load_dwordx4 {vr(OA+8*k,4)}, v{vLANE16}, {sr(SIN,4)}, s22 offen sc1', f'fin{k}')
        g.vm(f'buffer_load_dwordx4 {vr(OA+8*k+4,4)}, v{vLANE16}, {sr(SIN,4)}, s22 offen offset:1024 sc1', f'fin{k}')
    g(f'''
    s_lshl_b32 s22, s{sOCT}, 16
    s_lshl_b32 s23, s{sBR}, 10
    s_add_u32 s22, s22, s23
    s_lshl_b32 s23, s{sHS}, 8
    s_add_u32 s22, s22, s23
    s_lshl_b32 s23, s{sW}, 5
    s_add_u32 s22, s22, s23
    s_waitcnt lgkmcnt(0)
    ''')
    for k in range(3):
        g.vmwait(f'fin{k}')
        for r in range(0, 8, 2):
            g(f'v_pk_add_f32 {vr(S+r,2)}, {vr(S+r,2)}, {vr(OA+8*k+r,2)}')
    g(f'''
    v_cvt_pk_bf16_f32 v{P}, v{S}, v{S+1}
    v_cvt_pk_bf16_f32 v{P+1}, v{S+2}, v{S+3}
    v_cvt_pk_bf16_f32 v{P+2}, v{S+4}, v{S+5}
    v_cvt_pk_bf16_f32 v{P+3}, v{S+6}, v{S+7}
    buffer_store_dwordx4 {vr(P,4)}, v{vT+1}, {sr(SOUT,4)}, s22 offen
    ''')

def fine_store(g, args):
    if not args.fine: return
    g('s_waitcnt lgkmcnt(0)')
    for i0 in g.fpend: g(f'v_writelane_b32 v250, s{[70,78,80][i0 % 3]}, {i0}')
    g(f'''
    s_lshl_b32 s23, s2, 11
    s_lshl_b32 s74, s{sW}, 8
    s_add_u32 s23, s23, s74
    s_add_u32 s72, s56, {128<<20}
    s_addc_u32 s73, s57, 0
    s_mov_b32 s74, 0x80000
    s_mov_b32 s75, 0x20000
    v_lshrrev_b32 v3, 2, v{vLANE16}
    buffer_store_dword v250, v3, s[72:75], s23 offen
    ''')
    open('fine_names_0.txt','w').write('\n'.join(g.fnames))
    open('fine_names_1.txt','w').write('\n'.join(g.fnames))

def stamp(g, args, idx):
    if args.stamps:
        g(f's_memrealtime s[{62+2*idx}:{63+2*idx}]')

def stamp_store(g, args, region=0):
    if not args.stamps: return
    g('s_waitcnt vmcnt(0) lgkmcnt(0)')
    lab = g.label('nost')
    g(f'''
    s_memrealtime s[68:69]
    s_waitcnt lgkmcnt(0)
    s_cmp_eq_u32 s{sW}, 0
    s_cbranch_scc0 {lab}
    s_lshl_b32 s23, s2, 6
    s_add_u32 s72, s56, {STAMP_OFF + region*16384}
    s_addc_u32 s73, s57, 0
    s_mov_b32 s74, 0x4000
    s_mov_b32 s75, 0x20000
    v_mov_b32 v4, s60
    v_mov_b32 v5, s61
    v_mov_b32 v6, s68
    v_mov_b32 v7, s69
    v_mov_b32 v8, s62
    v_mov_b32 v9, s63
    v_mov_b32 v10, s64
    v_mov_b32 v11, s65
    v_mov_b32 v12, s66
    v_mov_b32 v13, s67
    v_mov_b32 v14, 0
    v_mov_b32 v15, 0
    v_mov_b32 v3, 0
    s_mov_b64 exec, 1
    buffer_store_dwordx4 v[4:7], v3, s[72:75], s23 offen
    buffer_store_dwordx4 v[8:11], v3, s[72:75], s23 offen offset:16
    buffer_store_dwordx4 v[12:15], v3, s[72:75], s23 offen offset:32
    {lab}:
    ''')

def k1(args):
    g = G(args)
    HD = 4
    setup(g, args)
    if args.fine:
        g('v_mov_b32 v250, 0')
        g('v_writelane_b32 v250, s76, 0')
        g.fnames.append('entry')
        g.fine('setup')
    qphase(g, args, HD)
    stamp(g, args, 0)
    g.fine('q_end')
    post_q(g, args)
    q_epilogue(g, args)
    g.fine('q_epi')
    rare_sites = []
    GATE = args.gate
    for t in range(16):
        g.vmwait(f'kv{t}')
        if t == 10: g.vmwait('ost')
        if t == 15: g.vmwait([f'p{p}' for p in range(8)])
        if args.fine == 2: g.fine(f'a{t}_w')
        g('s_barrier')
        if args.fine == 2: g.fine(f'a{t}_b')
        if t == 0:
            def r0(g): pass
            def r1(g):
                for ks in range(8):
                    g(f'ds_read_b128 {vr(Q1+4*ks,4)}, v{vQX} offset:{ks*1024}')
                g('s_waitcnt lgkmcnt(0)')
            g.roles(r0, r1)
        if t == 9: switch_exchange(g)
        if t == 10: flag_set(g, 0)
        if t == 13: poll_check(g, 'init', 'pinit')
        if t == 15: poll_check(g, 'f1', 'pf1')
        fillers = {}
        kvs = [(t+2, i) for i in range(4)] if t + 2 < 16 else []
        gate = None if t == 8 else GATE
        pos = [int(x) if x.lstrip('-').isdigit() else x for x in args.kvpos.split(',')]
        epi_fill = []
        for (tt, i), p in zip(kvs, pos):
            f = (lambda tt=tt, i=i: kv_instr(g, tt, i, HD, gate))
            if t == 8 and i == 0:
                epi_fill.append(lambda tt=tt, i=i: kv_instr(g, tt, i, HD, GATE))
            else:
                fillers.setdefault(p, []).append(f)
        def add(p, f): fillers.setdefault(p, []).append(f)
        if 9 <= t <= 12:
            for k, p in enumerate(range(2*(t-9), 2*(t-9)+2)):
                add([3, 11][k], lambda p=p: wo_piece(g, p))
        if t == 11: add(7, lambda: poll_issue(g, 'init', 'pinit'))
        if t == 13: add(3, lambda: poll_issue(g, 'f1', 'pf1'))
        if t == 15:
            k = 0
            for i in range(2):
                for ks in range(4):
                    add(k, lambda i=i, ks=ks: o_load(g, i, 0, ks)); k += 1
            for ks in range(4):
                add(9 + ks, lambda ks=ks: o_load(g, 2, 0, ks))
        if t == 8:
            head_epilogue(g, 0, HD, args, epi_fill)
            if args.fine == 2: g.fine('epi0')
        post = None
        if t == 0:
            def post():
                def r0(g): pass
                def r1(g):
                    for ks in range(8):
                        g(f'ds_write_b128 v{vQX}, {vr(Q2+4*ks,4)} offset:{32768 + ks*1024}')
                g.roles(r0, r1)
        if t == 1:
            def post():
                def r0(g):
                    for ks in range(8):
                        g(f'ds_read_b128 {vr(Q2+4*ks,4)}, v{vQX} offset:{32768 + ks*1024}')
                def r1(g): pass
                g.roles(r0, r1)
        attn_step(g, t, args, HD, rare_sites, fillers, post)
    g('s_barrier')
    stamp(g, args, 1)
    if args.fine == 2: g.fine('a_end')
    def addr():
        for b in range(4):
            g(f'v_add_u32 v{vKA+b}, {(-49152) & 0xffffffff:#x}, v{vVA+b}')
            g(f'v_add_u32 v{vKA+4+b}, 16384, v{vVA+b}')
            g(f'v_add_u32 v{vVA+b}, 49152, v{vVA+b}')
    head_epilogue(g, 1, HD, args, [addr], [lambda p=p: wo_piece(g, p) for p in range(8, 12)])
    stamp(g, args, 2)
    if args.fine == 2: g.fine('epi1')
    tail(g, args)
    g.fine('end')
    fine_store(g, args)
    stamp_store(g, args)
    g('s_endpgm')
    rare_path(g, rare_sites)
    g('L_end:\ns_endpgm')
    return g.text()

def main():
    ap = argparse.ArgumentParser()
    ap.add_argument('-o', default='k3.s')
    ap.add_argument('--stamps', action='store_true')
    ap.add_argument('--fine', type=int, default=0)
    ap.add_argument('--rot', type=int, default=1)
    ap.add_argument('--gate', type=int, default=1)
    ap.add_argument('--qfill', type=int, default=2)
    ap.add_argument('--kvq', default='29,29,30,30,30,31,31,31')
    ap.add_argument('--kvpos', default='1,5,9,13')
    ap.add_argument('--ost', default=' sc1')
    ap.add_argument('--lag', type=int, default=1)
    ap.add_argument('--trot_b', type=int, default=0)
    ap.add_argument('--trot_hs', type=int, default=0)
    ap.add_argument('--trot_o', type=int, default=0)
    ap.add_argument('--tE2', type=int, default=4)
    ap.add_argument('--tpoll', type=int, default=10)
    ap.add_argument('--tchk', type=int, default=14)
    args = ap.parse_args()
    t1 = k1(args)
    k1t, k1d = kernel_text(KNAME, t1, vgpr=256)
    txt = file_text([(KNAME, 256, 512, LDS_BYTES)], [(k1t, k1d)])
    open(args.o, 'w').write(txt)
    hazchk.check(t1)

if __name__ == '__main__':
    main()
```
